```python
import torch

def _softmax(x, axis=-1):
    return torch.softmax(x, dim=axis)
def _gelu(x):
    return torch.nn.functional.gelu(x, approximate="tanh")
def _silu(x):
    return torch.nn.functional.silu(x)
def _sigmoid(x):
    return torch.sigmoid(x)
def _layernorm(x, axis=-1, eps=1e-5):
    m = x.mean(dim=axis, keepdim=True)
    v = x.var(dim=axis, keepdim=True, unbiased=False)
    return (x - m) / torch.sqrt(v + eps)
def _scatter_add(tgt, idx, src, axis=0):
    return tgt.clone().index_add_(axis, idx, src)
def _segment_sum(src, seg, n):
    out = torch.zeros((n,) + src.shape[1:], dtype=src.dtype)
    return out.index_add_(0, seg, src)
def _pad(x, pw):
    flat = tuple(v for pair in reversed(pw) for v in pair)
    return torch.nn.functional.pad(x, flat)

kernel_name = 'interleave_layers__ssm_conv_h3__glu_gated_glu__prompt'

def setup_inputs():

    _w = (lambda a: (lambda t: t.to(torch.bfloat16) if t.is_floating_point() else t)(torch.as_tensor(a)))
    def _A_setup():
        B, S, D = 1, 2048, 640
        ks = 4
        return {
            "q": _w((lambda *s: torch.randn(*s, dtype=torch.bfloat16) * 0.05)(B, S, D)),
            "k": _w((lambda *s: torch.randn(*s, dtype=torch.bfloat16) * 0.4)(B, S, D)),
            "v": _w((lambda *s: torch.randn(*s, dtype=torch.bfloat16) * 0.4)(B, S, D)),
            "shift_k": _w((lambda *s: torch.randn(*s, dtype=torch.bfloat16) * 0.4)(D, ks) * 0.5),
            "ssm_k": _w((lambda *s: torch.randn(*s, dtype=torch.bfloat16) * 0.4)(D, S) * (1.0 / S ** 0.5)),
            "ssm_D": _w((lambda *s: torch.randn(*s, dtype=torch.bfloat16) * 0.4)(D)),
        }
    _A_in = _A_setup()

    def _B_setup():
        B, S, D, F = 1, 2048, 640, 1728
        return {
            "x": _w((lambda *s: torch.randn(*s, dtype=torch.bfloat16) * 0.05)(B, S, D)),
            "w_gate": _w((lambda *s: torch.randn(*s, dtype=torch.bfloat16) * 0.05)(D, F)),
            "w_up": _w((lambda *s: torch.randn(*s, dtype=torch.bfloat16) * 0.05)(D, F)),
            "w_down": _w((lambda *s: torch.randn(*s, dtype=torch.bfloat16) * 0.05)(F, D)),
        }
    _B_in = _B_setup()

    return {
        "A_q": _A_in["q"],
        "A_k": _A_in["k"],
        "A_v": _A_in["v"],
        "A_shift_k": _A_in["shift_k"],
        "A_ssm_k": _A_in["ssm_k"],
        "A_ssm_D": _A_in["ssm_D"],
        "B_x": _B_in["x"],
        "B_w_gate": _B_in["w_gate"],
        "B_w_up": _B_in["w_up"],
        "B_w_down": _B_in["w_down"],
    }

def reference(A_q, A_k, A_v, A_shift_k, A_ssm_k, A_ssm_D, B_x, B_w_gate, B_w_up, B_w_down):
    def _A_ref(q, k, v, shift_k, ssm_k, ssm_D):
        B, S, D = q.shape
        ks = shift_k.shape[-1]
        k_pad = _pad(k, ((0, 0), (ks - 1, 0), (0, 0)))
        k_shift = torch.zeros_like(k)
        for t in range(ks):
            k_shift = k_shift + k_pad[:, t:t + S, :] * shift_k[:, ks - 1 - t][None, None, :]
        kv = k_shift * v
        L = 2 * S
        kv_pad = _pad(kv, ((0, 0), (0, S), (0, 0)))
        kf_pad = _pad(ssm_k, ((0, 0), (0, S)))
        kv_f = (lambda x, axes=(-2,-1): torch.fft.rfft2(x.float(), dim=axes))(kv_pad[:, None, :, :], axes=(1, 2))
        kf_f = (lambda x, axes=(-2,-1): torch.fft.rfft2(x.float(), dim=axes))(kf_pad[:, None, :], axes=(1, 2))
        kf_f = (lambda x, *d: x.permute(*d))(kf_f, 1, 2, 0)
        y_f = kv_f * kf_f[None, :, :, :]
        y = (lambda x, s, axes=(-2,-1): torch.fft.irfft2(x, s=s, dim=axes).to(torch.bfloat16))(y_f, (1, L), axes=(1, 2))[:, 0, :S, :]
        y = y + kv * ssm_D[None, None, :]
        return q * y

    def _B_ref(x, w_gate, w_up, w_down):
        g = torch.einsum("bsd,df->bsf", x, w_gate)
        u = torch.einsum("bsd,df->bsf", x, w_up)
        h = _sigmoid(g) * u
        return torch.einsum("bsf,fd->bsd", h, w_down)

    x = A_q
    x = x + _A_ref(_layernorm(x, axis=-1), A_k, A_v, A_shift_k, A_ssm_k, A_ssm_D)
    x = x + _B_ref(_layernorm(x, axis=-1), B_w_gate, B_w_up, B_w_down)
    x = x + _A_ref(_layernorm(x, axis=-1), A_k, A_v, A_shift_k, A_ssm_k, A_ssm_D)
    x = x + _B_ref(_layernorm(x, axis=-1), B_w_gate, B_w_up, B_w_down)
    return x
```

```python
NAME = "interleave_layers__ssm_conv_h3__glu_gated_glu__prompt"
S, D, F = 2048, 640, 1728
XB = S * D * 2
WGU_OFF = 0;            WGU_SZ = 108 * 40 * 1024
WD_OFF = 0x480000;      WD_SZ = 20 * 108 * 1024
Y_OFF = 0x700000
X1_OFF = 0xA00000
X2_OFF = 0xD00000
X3_OFF = 0x1000000
XN_OFF = 0x1300000
H_OFF = 0x1600000;      H_SZ = 64 * 108 * 1024
out = []
def e(s): out.append(s)
def L(s): out.append("    " + s)

def srd(d, lo, hi, off, size):
    L(f"s_add_u32 s{d}, s{lo}, {off & 0xffffffff}")
    L(f"s_addc_u32 s{d+1}, s{hi}, 0")
    L(f"s_and_b32 s{d+1}, s{d+1}, 0xffff")
    L(f"s_mov_b32 s{d+2}, {size}")
    L(f"s_mov_b32 s{d+3}, 0x00020000")

def kbegin(name):
    e(f".globl {name}\n.p2align 8\n.type {name},@function\n{name}:")
descs = []
def kdesc(name, vgpr, sgpr=102):
    a = (vgpr + 3) // 4 * 4
    descs.append(f""".amdhsa_kernel {name}
  .amdhsa_next_free_vgpr {vgpr}
  .amdhsa_next_free_sgpr {sgpr}
  .amdhsa_accum_offset {a}
  .amdhsa_group_segment_fixed_size 0
  .amdhsa_kernarg_size 104
  .amdhsa_user_sgpr_count 2
  .amdhsa_user_sgpr_kernarg_segment_ptr 1
  .amdhsa_system_sgpr_workgroup_id_x 1
.end_amdhsa_kernel""")

def rbf(dst, src):
    L(f"v_cvt_pk_bf16_f32 v{dst}, v{src}, v{src}")
    L(f"v_lshlrev_b32 v{dst}, 16, v{dst}")

def gen_prep(name):
    NCONV = 160
    NPACK = 1620
    kbegin(name)
    L(f"s_cmp_ge_u32 s2, {NCONV+NPACK}")
    L(f"s_cbranch_scc1 {name}_end")
    L(f"s_cmp_ge_u32 s2, {NCONV}")
    L(f"s_cbranch_scc1 {name}_pack")
    KL = 4640; XR = 5120; PW = KL + XR; YS = 4 * PW
    L("s_load_dwordx4 s[4:7], s[0:1], 8")
    L("s_load_dwordx4 s[28:31], s[0:1], 24")
    L("s_load_dwordx2 s[32:33], s[0:1], 40")
    L("s_load_dwordx2 s[34:35], s[0:1], 96")
    L("v_lshlrev_b32 v1, 4, v0")
    L("v_mov_b32 v4, 0"); L("v_mov_b32 v5, 0"); L("v_mov_b32 v6, 0"); L("v_mov_b32 v7, 0")
    for i in range((YS + 4095) // 4096):
        L(f"ds_write_b128 v1, v[4:7] offset:{i*4096}")
    L("s_waitcnt lgkmcnt(0)")
    srd(8, 4, 5, 0, XB); srd(12, 6, 7, 0, XB); srd(16, 28, 29, 0, D*8); srd(20, 30, 31, 0, D*S*2)
    srd(24, 32, 33, 0, D*2); srd(36, 34, 35, Y_OFF, XB)
    L("s_lshl_b32 s3, s2, 3")
    L("v_mul_u32_u24 v2, 10240, v0")
    L("v_add_u32 v2, s3, v2")
    L("v_subrev_u32 v3, 3840, v2")
    for i in range(11):
        L(f"buffer_load_dwordx2 v[{10+2*i}:{11+2*i}], v3, s[8:11], 0 offen offset:{0}" if False else
          f"buffer_load_dwordx2 v[{10+2*i}:{11+2*i}], v3, s[8:11], 0 offen")
        L("v_add_u32 v3, 1280, v3")
    for i in range(8):
        L(f"buffer_load_dwordx2 v[{32+2*i}:{33+2*i}], v2, s[12:15], 0 offen")
        L("v_add_u32 v2, 1280, v2")
    L("s_lshl_b32 s40, s2, 5")
    L("v_mov_b32 v3, s40")
    L("buffer_load_dwordx4 v[48:51], v3, s[16:19], 0 offen")
    L("buffer_load_dwordx4 v[52:55], v3, s[16:19], 0 offen offset:16")
    L("v_lshrrev_b32 v4, 6, v0")
    L("v_and_b32 v5, 63, v0")
    L("v_lshl_add_u32 v6, s2, 2, v4")
    L("v_lshlrev_b32 v6, 12, v6")
    L("v_lshl_add_u32 v6, v5, 4, v6")
    for i in range(4):
        L(f"buffer_load_dwordx4 v[{56+4*i}:{59+4*i}], v6, s[20:23], 0 offen offset:{1024*i}")
    L(f"v_mul_u32_u24 v7, {PW}, v4")
    L("v_lshl_add_u32 v8, v5, 4, v7")
    L("s_barrier")
    L("s_waitcnt vmcnt(0)")
    for i in range(4):
        L(f"ds_write_b128 v8, v[{56+4*i}:{59+4*i}] offset:{32+1024*i}")
    for c in range(4):
        for h in range(2):
            L(f"v_lshlrev_b32 v{72+4*c+2*h}, 16, v{48+2*c+h}")
            L(f"v_and_b32 v{73+4*c+2*h}, 0xffff0000, v{48+2*c+h}")
    for i in range(22):
        L(f"v_lshlrev_b32 v{100+2*i}, 16, v{10+i}")
        L(f"v_and_b32 v{101+2*i}, 0xffff0000, v{10+i}")
    for i in range(16):
        L(f"v_lshlrev_b32 v{160+2*i}, 16, v{32+i}")
        L(f"v_and_b32 v{161+2*i}, 0xffff0000, v{32+i}")
    L("v_lshlrev_b32 v9, 4, v0")
    L(f"v_sub_u32 v9, {KL + 2064*2 - 14}, v9")
    for r in range(8):
        for c in range(4):
            a, p = 200, 201
            L(f"v_mul_f32 v{a}, v{100+4*r+c}, v{72+4*c+3}"); rbf(a, a)
            for tt in range(1, 4):
                L(f"v_mul_f32 v{p}, v{100+4*(r+tt)+c}, v{72+4*c+3-tt}"); rbf(p, p)
                L(f"v_add_f32 v{a}, v{a}, v{p}"); rbf(a, a)
            L(f"v_mul_f32 v{a}, v{a}, v{160+4*r+c}")
            L(f"v_cvt_pk_bf16_f32 v{a}, v{a}, v{a}")
            L(f"ds_write_b16 v9, v{a} offset:{c*PW + (7-r)*2}")
    L("s_waitcnt lgkmcnt(0)")
    L("s_barrier")
    L("v_and_b32 v10, 15, v5")
    L("v_lshrrev_b32 v11, 4, v5")
    L("v_lshlrev_b32 v12, 1, v10")
    L("v_lshl_add_u32 v12, v11, 4, v12")
    L("v_add_u32 v12, v7, v12")
    L("v_lshlrev_b32 v13, 5, v10")
    L("v_lshlrev_b32 v14, 4, v11")
    L("v_sub_u32 v13, v14, v13")
    L("v_add_u32 v13, v7, v13")
    for i in range(32): L(f"v_mov_b32 v{16+i}, 0")
    L("s_mov_b32 s41, 0")
    e(f"{name}_rl:")
    for v in range(-7, 2):
        L(f"ds_read_b128 v[{48+4*(v+7)}:{51+4*(v+7)}], v13 offset:{KL + 4096 + 512*v}")
    for m in range(9):
        L(f"ds_read_b128 v[{84+4*m}:{87+4*m}], v12 offset:{512*m}")
    for m in range(9):
        L(f"s_waitcnt lgkmcnt({8-m})")
        for q in range(max(0, m-1), 8):
            v = m - q
            L(f"v_mfma_f32_16x16x32_bf16 v[{16+4*q}:{19+4*q}], v[{84+4*m}:{87+4*m}], v[{48+4*(v+7)}:{51+4*(v+7)}], v[{16+4*q}:{19+4*q}]")
    L("v_add_u32 v12, 64, v12")
    L("v_add_u32 v13, 64, v13")
    L("s_add_u32 s41, s41, 1")
    L("s_cmp_lt_u32 s41, 8")
    L(f"s_cbranch_scc1 {name}_rl")
    L("v_lshl_add_u32 v6, s2, 2, v4")
    L("v_lshlrev_b32 v6, 1, v6")
    L("buffer_load_ushort v15, v6, s[24:27], 0 offen")
    L("v_lshlrev_b32 v10, 4, v10")
    L("v_lshl_add_u32 v10, v11, 2, v10")
    L("v_lshlrev_b32 v11, 1, v10")
    L(f"v_sub_u32 v11, {KL + 2061*2 - 7*512}, v11")
    L("v_add_u32 v11, v7, v11")
    L("v_lshlrev_b32 v12, 3, v10")
    L("v_lshl_add_u32 v12, v4, 1, v12")
    L("s_waitcnt vmcnt(0)")
    L("v_lshlrev_b32 v15, 16, v15")
    L("s_nop 7")
    for q in range(8):
        L(f"ds_read_b64 v[48:49], v11 offset:{(7-q)*512}")
        L("s_waitcnt lgkmcnt(0)")
        L("v_and_b32 v50, 0xffff0000, v49"); L("v_lshlrev_b32 v51, 16, v49")
        L("v_and_b32 v52, 0xffff0000, v48"); L("v_lshlrev_b32 v53, 16, v48")
        for i in range(4):
            L(f"v_mul_f32 v{50+i}, v{50+i}, v15"); rbf(50+i, 50+i)
            rbf(16+4*q+i, 16+4*q+i)
            L(f"v_add_f32 v{50+i}, v{50+i}, v{16+4*q+i}")
            L(f"v_cvt_pk_bf16_f32 v{50+i}, v{50+i}, v{50+i}")
            L(f"ds_write_b16 v12, v{50+i} offset:{YS + q*2048 + i*8}")
    L("s_waitcnt lgkmcnt(0)")
    L("s_barrier")
    L("v_lshlrev_b32 v1, 3, v0")
    L("v_mul_u32_u24 v2, 1280, v0")
    L("v_add_u32 v2, s3, v2")
    for i in range(8):
        L(f"ds_read_b64 v[{10+2*i}:{11+2*i}], v1 offset:{YS + i*2048}")
    L("s_waitcnt lgkmcnt(0)")
    for i in range(8):
        L(f"buffer_store_dwordx2 v[{10+2*i}:{11+2*i}], v2, s[36:39], 0 offen")
        L(f"v_add_u32 v2, {256*1280}, v2")
    L("s_endpgm")
    e(f"{name}_pack:")
    L("s_load_dwordx4 s[4:7], s[0:1], 56")
    L("s_load_dwordx2 s[28:29], s[0:1], 72")
    L("s_load_dwordx2 s[34:35], s[0:1], 96")
    L("v_lshrrev_b32 v4, 6, v0")
    L("s_nop 1")
    L("v_readfirstlane_b32 s3, v4")
    L(f"s_sub_u32 s40, s2, {NCONV}")
    L("s_lshl_b32 s40, s40, 2")
    L("s_add_u32 s40, s40, s3")
    L("v_and_b32 v5, 31, v0")
    L("v_bfe_u32 v6, v0, 5, 1")
    L("s_waitcnt lgkmcnt(0)")
    srd(16, 34, 35, 0, WD_OFF + WD_SZ)
    L("s_lshl_b32 s47, s40, 10")
    L("s_cmp_ge_u32 s40, 4320")
    L(f"s_cbranch_scc1 {name}_pd")
    L(f"s_mul_hi_u32 s41, s40, {(2**32+39)//40}")
    L("s_mul_i32 s42, s41, 40")
    L("s_sub_u32 s42, s40, s42")
    L("s_and_b32 s43, s41, 1")
    L("s_cmp_eq_u32 s43, 0")
    L("s_cselect_b32 s44, s4, s6")
    L("s_cselect_b32 s45, s5, s7")
    srd(8, 44, 45, 0, D*F*2)
    L("s_lshr_b32 s43, s41, 1")
    L("s_lshl_b32 s43, s43, 5")
    L("s_movk_i32 s46, 3456")
    L(f"s_branch {name}_pgo")
    e(f"{name}_pd:")
    L("s_sub_u32 s40, s40, 4320")
    L(f"s_mul_hi_u32 s41, s40, {(2**32+107)//108}")
    L("s_mul_i32 s42, s41, 108")
    L("s_sub_u32 s42, s40, s42")
    srd(8, 28, 29, 0, D*F*2)
    L("s_lshl_b32 s43, s41, 5")
    L("s_movk_i32 s46, 1280")
    L("s_lshl_b32 s47, s40, 10")
    L(f"s_add_u32 s47, s47, {WD_OFF}")
    e(f"{name}_pgo:")
    L("s_lshl_b32 s42, s42, 4")
    L("v_lshl_add_u32 v6, v6, 3, s42")
    L("v_mul_lo_u32 v6, v6, s46")
    L("v_add_u32 v5, s43, v5")
    L("v_lshl_add_u32 v6, v5, 1, v6")
    for i in range(4):
        L(f"buffer_load_ushort v{10+i}, v6, s[8:11], 0 offen")
        L("v_add_u32 v6, s46, v6")
        L(f"buffer_load_ushort v{20+i}, v6, s[8:11], 0 offen")
        L("v_add_u32 v6, s46, v6")
    L("v_and_b32 v7, 63, v0")
    L("v_lshlrev_b32 v7, 4, v7")
    L("s_waitcnt vmcnt(0)")
    for i in range(4): L(f"v_lshl_or_b32 v{10+i}, v{20+i}, 16, v{10+i}")
    L("buffer_store_dwordx4 v[10:13], v7, s[16:19], s47 offen")
    e(f"{name}_end:")
    L("s_endpgm")
    kdesc(name, 208)
    return (NCONV + NPACK, 256, 4 * PW + 16384)

def dpp_sum(v):
    for r in (8, 4, 2, 1):
        L("s_nop 1")
        L(f"v_add_f32_dpp v{v}, v{v}, v{v} row_ror:{r} row_mask:0xf bank_mask:0xf")

def ln_core(x0):
    L(f"v_mov_b32 v90, v{x0}")
    for i in range(1, 40): L(f"v_add_f32 v90, v90, v{x0+i}")
    dpp_sum(90)
    L(f"v_mul_f32 v90, {1.0/640!r}, v90")
    L("v_mov_b32 v91, 0")
    for i in range(40):
        L(f"v_sub_f32 v92, v{x0+i}, v90")
        L("v_fmac_f32 v91, v92, v92")
    dpp_sum(91)
    L(f"v_mul_f32 v91, {1.0/640!r}, v91")
    rbf(91, 91)
    L("v_add_f32 v91, 0x3727c5ac, v91"); rbf(91, 91)
    L("v_sqrt_f32 v91, v91"); L("s_nop 0"); rbf(91, 91)
    L("v_rcp_f32 v91, v91")
    rbf(90, 90)
    for i in range(40):
        L(f"v_sub_f32 v{100+i}, v{x0+i}, v90"); rbf(100+i, 100+i)
        L(f"v_mul_f32 v{100+i}, v{100+i}, v91"); rbf(100+i, 100+i)

def gen_ln(name, in_k, in_off, out_off):
    kbegin(name)
    L("s_cmp_ge_u32 s2, 512")
    L(f"s_cbranch_scc1 {name}_end")
    L(f"s_load_dwordx2 s[4:5], s[0:1], {in_k}")
    L("s_load_dwordx2 s[6:7], s[0:1], 96")
    L("v_lshrrev_b32 v1, 4, v0")
    L("v_and_b32 v2, 15, v0")
    L("v_lshl_add_u32 v1, s2, 2, v1")
    L("v_mul_u32_u24 v3, 1280, v1")
    L("v_lshl_add_u32 v3, v2, 4, v3")
    L("s_waitcnt lgkmcnt(0)")
    srd(8, 4, 5, in_off, XB); srd(12, 6, 7, Y_OFF, XB); srd(16, 6, 7, out_off, XB); srd(20, 6, 7, XN_OFF, XB)
    for i in range(5):
        L(f"buffer_load_dwordx4 v[{140+4*i}:{143+4*i}], v3, s[8:11], 0 offen offset:{256*i}")
    for i in range(5):
        L(f"buffer_load_dwordx4 v[{160+4*i}:{163+4*i}], v3, s[12:15], 0 offen offset:{256*i}")
    L("s_waitcnt vmcnt(5)")
    for i in range(20):
        L(f"v_lshlrev_b32 v{10+2*i}, 16, v{140+i}")
        L(f"v_and_b32 v{11+2*i}, 0xffff0000, v{140+i}")
    ln_core(10)
    L("s_waitcnt vmcnt(0)")
    for i in range(20):
        for h in range(2):
            j = 2*i+h
            if h == 0: L(f"v_lshlrev_b32 v92, 16, v{160+i}")
            else: L(f"v_and_b32 v92, 0xffff0000, v{160+i}")
            L(f"v_mul_f32 v92, v92, v{100+j}"); rbf(92, 92)
            L(f"v_add_f32 v{10+j}, v{10+j}, v92"); rbf(10+j, 10+j)
        L(f"v_cvt_pk_bf16_f32 v{140+i}, v{10+2*i}, v{11+2*i}")
    for i in range(5):
        L(f"buffer_store_dwordx4 v[{140+4*i}:{143+4*i}], v3, s[16:19], 0 offen offset:{256*i}")
    ln_core(10)
    for i in range(20):
        L(f"v_cvt_pk_bf16_f32 v{160+i}, v{100+2*i}, v{101+2*i}")
    L("v_lshrrev_b32 v4, 5, v1")
    L("v_mul_u32_u24 v4, 40960, v4")
    L("v_and_b32 v5, 31, v1")
    L("v_lshl_add_u32 v4, v5, 4, v4")
    L("v_lshl_add_u32 v4, v2, 9, v4")
    for i in range(5):
        L(f"buffer_store_dwordx4 v[{160+4*i}:{163+4*i}], v4, s[20:23], 0 offen")
        L("v_add_u32 v4, 8192, v4")
    e(f"{name}_end:")
    L("s_endpgm")
    kdesc(name, 184)
    return (512, 64, 0)

def gen_gemm(name, kind, res_off=None, out_ws=True, out_off=None):
    gu = kind == "gu"
    KS = 40 if gu else 108
    TN = 4 if gu else 2
    NCT = 27 if gu else 10
    NWG = 16 * NCT
    STG = (4 + TN) * 4096
    NS = KS // 4
    WN = TN // 2
    NDMA = 4 + TN
    kbegin(name)
    L(f"s_cmp_ge_u32 s2, {NWG}")
    L(f"s_cbranch_scc1 {name}_end")
    L("s_load_dwordx2 s[4:5], s[0:1], 96")
    L("s_load_dwordx2 s[6:7], s[0:1], 80")
    L(f"s_mul_hi_u32 s24, s2, {(2**32+NCT-1)//NCT}")
    L(f"s_mul_i32 s25, s24, {NCT}")
    L("s_sub_u32 s25, s2, s25")
    L("v_lshrrev_b32 v4, 6, v0")
    L("v_and_b32 v5, 63, v0")
    L("v_lshlrev_b32 v5, 4, v5")
    L("v_readfirstlane_b32 s26, v4")
    L("s_waitcnt lgkmcnt(0)")
    if gu:
        srd(8, 4, 5, XN_OFF, XB); srd(12, 4, 5, WGU_OFF, WGU_SZ); srd(16, 4, 5, H_OFF, H_SZ)
    else:
        srd(8, 4, 5, H_OFF, H_SZ); srd(12, 4, 5, WD_OFF, WD_SZ)
        if out_ws: srd(16, 4, 5, out_off, XB)
        else: srd(16, 6, 7, 0, XB)
        srd(20, 4, 5, res_off, XB)
    L("s_lshl_b32 s27, s24, 2"); L("s_add_u32 s27, s27, s26"); L(f"s_mul_i32 s27, s27, {KS*1024}")
    L("v_add_u32 v1, s27, v5")
    L("s_lshl_b32 s28, s26, 12")
    if gu:
        L("s_lshl_b32 s27, s25, 2"); L("s_add_u32 s27, s27, s26"); L(f"s_mul_i32 s27, s27, {KS*1024}")
        L("s_add_u32 s29, s28, 16384")
    else:
        L("s_and_b32 s30, s26, 1"); L("s_lshr_b32 s31, s26, 1")
        L("s_lshl_b32 s27, s25, 1"); L("s_add_u32 s27, s27, s30"); L(f"s_mul_i32 s27, s27, {KS*1024}")
        L("s_lshl_b32 s31, s31, 11"); L("s_add_u32 s27, s27, s31")
        L("s_lshl_b32 s29, s30, 12"); L("s_add_u32 s29, s29, s31"); L("s_add_u32 s29, s29, 16384")
    L("v_add_u32 v2, s27, v5")
    L("s_lshr_b32 s30, s26, 1"); L("s_and_b32 s31, s26, 1")
    L("s_lshl_b32 s32, s30, 13")
    L("v_add_u32 v6, s32, v5")
    L(f"s_mul_i32 s32, s31, {WN*4096}"); L("s_add_u32 s32, s32, 16384")
    L("v_add_u32 v7, s32, v5")
    ACC = 64
    for i in range(32 * WN): L(f"v_mov_b32 v{ACC+i}, 0")
    L("s_mov_b32 s33, 0")
    L("s_mov_b32 s34, 0")
    def issue():
        L("s_add_u32 m0, s34, s28")
        L("s_nop 0")
        for kk in range(4):
            L(f"buffer_load_dwordx4 v1, s[8:11], s33 offen offset:{kk*1024} lds")
        L("s_add_u32 m0, s34, s29")
        L("s_nop 0")
        for kk in range(TN):
            L(f"buffer_load_dwordx4 v2, s[12:15], s33 offen offset:{kk*1024} lds")
        L("s_add_u32 s33, s33, 4096")
        L(f"s_add_u32 s34, s34, {STG}")
        L(f"s_cmp_eq_u32 s34, {3*STG}")
        L("s_cselect_b32 s34, 0, s34")
    issue(); issue()
    L("s_mov_b32 s35, 0")
    L("s_mov_b32 s36, 0")
    e(f"{name}_loop:")
    L(f"s_waitcnt vmcnt({NDMA})")
    L("s_barrier")
    issue()
    L("v_add_u32 v8, s35, v6")
    L("v_add_u32 v9, s35, v7")
    NF = 2 + WN
    def rd(kk):
        b = 10 + (kk % 2) * NF * 4
        for r in range(2):
            L(f"ds_read_b128 v[{b+4*r}:{b+4*r+3}], v8 offset:{r*4096+kk*1024}")
        for n in range(WN):
            L(f"ds_read_b128 v[{b+8+4*n}:{b+8+4*n+3}], v9 offset:{n*4096+kk*1024}")
    rd(0)
    for kk in range(4):
        if kk < 3:
            rd(kk+1); L(f"s_waitcnt lgkmcnt({NF})")
        else:
            L("s_waitcnt lgkmcnt(0)")
        b = 10 + (kk % 2) * NF * 4
        for r in range(2):
            for n in range(WN):
                a = ACC + 16 * (r * WN + n)
                L(f"v_mfma_f32_32x32x16_bf16 v[{a}:{a+15}], v[{b+8+4*n}:{b+8+4*n+3}], v[{b+4*r}:{b+4*r+3}], v[{a}:{a+15}]")
    L(f"s_add_u32 s35, s35, {STG}")
    L(f"s_cmp_eq_u32 s35, {3*STG}")
    L("s_cselect_b32 s35, 0, s35")
    L("s_add_u32 s36, s36, 1")
    L(f"s_cmp_lt_u32 s36, {NS}")
    L(f"s_cbranch_scc1 {name}_loop")
    L("s_nop 15")
    L("v_and_b32 v10, 31, v0")
    L("v_bfe_u32 v11, v0, 5, 1")
    if gu:
        for r in range(2):
            L("s_lshl_b32 s40, s24, 2"); L("s_lshl_b32 s41, s30, 1"); L("s_add_u32 s40, s40, s41")
            L(f"s_add_u32 s40, s40, {r}"); L("s_mul_i32 s40, s40, 108")
            L("s_lshl_b32 s41, s25, 2"); L("s_add_u32 s40, s40, s41"); L("s_lshl_b32 s41, s31, 1"); L("s_add_u32 s40, s40, s41")
            L("s_lshl_b32 s40, s40, 10")
            L("v_lshlrev_b32 v12, 4, v10")
            L("v_lshl_add_u32 v12, v11, 3, v12")
            g0 = ACC + 32 * r; u0 = g0 + 16
            for i in range(16):
                rbf(g0+i, g0+i); rbf(u0+i, u0+i)
                L(f"v_mul_f32 v{g0+i}, 0xbfb8aa3b, v{g0+i}")
                L(f"v_exp_f32 v{g0+i}, v{g0+i}")
                L("s_nop 0")
                L(f"v_add_f32 v{g0+i}, 1.0, v{g0+i}")
                L(f"v_rcp_f32 v{g0+i}, v{g0+i}")
                L("s_nop 0")
                rbf(g0+i, g0+i)
                L(f"v_mul_f32 v{g0+i}, v{g0+i}, v{u0+i}")
            for g4 in range(4):
                L(f"v_cvt_pk_bf16_f32 v14, v{g0+4*g4}, v{g0+4*g4+1}")
                L(f"v_cvt_pk_bf16_f32 v15, v{g0+4*g4+2}, v{g0+4*g4+3}")
                L(f"buffer_store_dwordx2 v[14:15], v12, s[16:19], s40 offen offset:{(g4//2)*1024+(g4%2)*512}")
                L("s_nop 1")
    else:
        for r in range(2):
            L("s_lshl_b32 s40, s24, 7"); L("s_lshl_b32 s41, s30, 6"); L("s_add_u32 s40, s40, s41")
            L(f"s_add_u32 s40, s40, {32*r}")
            L("v_add_u32 v12, s40, v10")
            L("v_mul_u32_u24 v12, 1280, v12")
            L("s_lshl_b32 s40, s25, 7"); L("s_lshl_b32 s41, s31, 6"); L("s_add_u32 s40, s40, s41")
            L("v_lshl_add_u32 v13, v11, 3, s40")
            L("v_add_u32 v12, v12, v13")
            a0 = ACC + 16 * r
            for g4 in range(4):
                L(f"buffer_load_dwordx2 v[{16+2*g4}:{17+2*g4}], v12, s[20:23], 0 offen offset:{16*g4}")
            for g4 in range(4):
                L(f"s_waitcnt vmcnt({3-g4})" if r == 0 else f"s_waitcnt vmcnt({min(3-g4, 3)})")
                for i in range(4):
                    rbf(a0+4*g4+i, a0+4*g4+i)
                    if i % 2 == 0: L(f"v_lshlrev_b32 v14, 16, v{16+2*g4+i//2}")
                    else: L(f"v_and_b32 v14, 0xffff0000, v{16+2*g4+i//2}")
                    L(f"v_add_f32 v{a0+4*g4+i}, v{a0+4*g4+i}, v14")
                L(f"v_cvt_pk_bf16_f32 v{24+2*g4}, v{a0+4*g4}, v{a0+4*g4+1}")
                L(f"v_cvt_pk_bf16_f32 v{25+2*g4}, v{a0+4*g4+2}, v{a0+4*g4+3}")
            for g4 in range(4):
                L(f"buffer_store_dwordx2 v[{24+2*g4}:{25+2*g4}], v12, s[16:19], 0 offen offset:{16*g4}")
            L("s_waitcnt vmcnt(0)")
    e(f"{name}_end:")
    L("s_endpgm")
    kdesc(name, ACC + 32 * WN)
    return (NWG, 256, 3 * STG)

launches = []
def add(n, cfg): launches.append((n, cfg))
add("k0_kernel", gen_prep("k0_kernel"))
add("k1_kernel", gen_ln("k1_kernel", 0, 0, X1_OFF))
add("k2_kernel", gen_gemm("k2_kernel", "gu"))
add("k3_kernel", gen_gemm("k3_kernel", "dn", res_off=X1_OFF, out_ws=True, out_off=X2_OFF))
add("k4_kernel", gen_ln("k4_kernel", 96, X2_OFF, X3_OFF))
add("k5_kernel", gen_gemm("k5_kernel", "gu"))
add("k6_kernel", gen_gemm("k6_kernel", "dn", res_off=X3_OFF, out_ws=False))
hdr = [f"; @launch kernel={n} grid=({g},1,1) block=({b},1,1) lds={l}" for n, (g, b, l) in launches]
txt = "\n".join(hdr) + '\n.amdgcn_target "amdgcn-amd-amdhsa--gfx950"\n.text\n' + "\n".join(out) + '\n.section .rodata,"a"\n' + "\n".join(".p2align 6\n" + d for d in descs) + "\n"
open(f"cdna_kernels/{NAME}.s", "w").write(txt)
```

```python
NAME = "interleave_layers__ssm_conv_h3__glu_gated_glu__prompt"
S, D, F = 2048, 640, 1728
XB = S * D * 2
WGU_OFF = 0;            WGU_SZ = 108 * 40 * 1024
WD_OFF = 0x480000;      WD_SZ = 20 * 108 * 1024
Y_OFF = 0x700000
X1_OFF = 0xA00000
X2_OFF = 0xD00000
X3_OFF = 0x1000000
XN_OFF = 0x1300000
H_OFF = 0x1600000;      H_SZ = 64 * 108 * 1024
out = []
def e(s): out.append(s)
def L(s): out.append("    " + s)

def srd(d, lo, hi, off, size):
    L(f"s_add_u32 s{d}, s{lo}, {off & 0xffffffff}")
    L(f"s_addc_u32 s{d+1}, s{hi}, 0")
    L(f"s_and_b32 s{d+1}, s{d+1}, 0xffff")
    L(f"s_mov_b32 s{d+2}, {size}")
    L(f"s_mov_b32 s{d+3}, 0x00020000")

def kbegin(name):
    e(f".globl {name}\n.p2align 8\n.type {name},@function\n{name}:")
descs = []
def kdesc(name, vgpr, sgpr=102):
    a = (vgpr + 3) // 4 * 4
    descs.append(f""".amdhsa_kernel {name}
  .amdhsa_next_free_vgpr {vgpr}
  .amdhsa_next_free_sgpr {sgpr}
  .amdhsa_accum_offset {a}
  .amdhsa_group_segment_fixed_size 0
  .amdhsa_kernarg_size 104
  .amdhsa_user_sgpr_count 2
  .amdhsa_user_sgpr_kernarg_segment_ptr 1
  .amdhsa_system_sgpr_workgroup_id_x 1
.end_amdhsa_kernel""")

def rbf(dst, src):
    L(f"v_cvt_pk_bf16_f32 v{dst}, v{src}, v{src}")
    L(f"v_lshlrev_b32 v{dst}, 16, v{dst}")

def gen_prep(name):
    NCONV = 160
    NPACK = 405
    kbegin(name)
    L(f"s_cmp_ge_u32 s2, {NCONV+NPACK}")
    L(f"s_cbranch_scc1 {name}_end")
    L(f"s_cmp_ge_u32 s2, {NCONV}")
    L(f"s_cbranch_scc1 {name}_pack")
    KL = 4640; XR = 5120; PW = KL + XR; YS = 4 * PW
    L("s_load_dwordx4 s[4:7], s[0:1], 8")
    L("s_load_dwordx4 s[28:31], s[0:1], 24")
    L("s_load_dwordx2 s[32:33], s[0:1], 40")
    L("s_load_dwordx2 s[34:35], s[0:1], 96")
    L("v_lshlrev_b32 v1, 4, v0")
    L("v_mov_b32 v4, 0"); L("v_mov_b32 v5, 0"); L("v_mov_b32 v6, 0"); L("v_mov_b32 v7, 0")
    for i in range((YS + 4095) // 4096):
        L(f"ds_write_b128 v1, v[4:7] offset:{i*4096}")
    L("s_waitcnt lgkmcnt(0)")
    srd(8, 4, 5, 0, XB); srd(12, 6, 7, 0, XB); srd(16, 28, 29, 0, D*8); srd(20, 30, 31, 0, D*S*2)
    srd(24, 32, 33, 0, D*2); srd(36, 34, 35, Y_OFF, XB)
    L("s_lshl_b32 s3, s2, 3")
    L("v_mul_u32_u24 v2, 10240, v0")
    L("v_add_u32 v2, s3, v2")
    L("v_subrev_u32 v3, 3840, v2")
    for i in range(11):
        L(f"buffer_load_dwordx2 v[{10+2*i}:{11+2*i}], v3, s[8:11], 0 offen offset:{0}" if False else
          f"buffer_load_dwordx2 v[{10+2*i}:{11+2*i}], v3, s[8:11], 0 offen")
        L("v_add_u32 v3, 1280, v3")
    for i in range(8):
        L(f"buffer_load_dwordx2 v[{32+2*i}:{33+2*i}], v2, s[12:15], 0 offen")
        L("v_add_u32 v2, 1280, v2")
    L("s_lshl_b32 s40, s2, 5")
    L("v_mov_b32 v3, s40")
    L("buffer_load_dwordx4 v[48:51], v3, s[16:19], 0 offen")
    L("buffer_load_dwordx4 v[52:55], v3, s[16:19], 0 offen offset:16")
    L("v_lshrrev_b32 v4, 6, v0")
    L("v_and_b32 v5, 63, v0")
    L("v_lshl_add_u32 v6, s2, 2, v4")
    L("v_lshlrev_b32 v6, 12, v6")
    L("v_lshl_add_u32 v6, v5, 4, v6")
    for i in range(4):
        L(f"buffer_load_dwordx4 v[{56+4*i}:{59+4*i}], v6, s[20:23], 0 offen offset:{1024*i}")
    L(f"v_mul_u32_u24 v7, {PW}, v4")
    L("v_lshl_add_u32 v8, v5, 4, v7")
    L("s_barrier")
    L("s_waitcnt vmcnt(0)")
    for i in range(4):
        L(f"ds_write_b128 v8, v[{56+4*i}:{59+4*i}] offset:{32+1024*i}")
    for c in range(4):
        for h in range(2):
            L(f"v_lshlrev_b32 v{72+4*c+2*h}, 16, v{48+2*c+h}")
            L(f"v_and_b32 v{73+4*c+2*h}, 0xffff0000, v{48+2*c+h}")
    for i in range(22):
        L(f"v_lshlrev_b32 v{100+2*i}, 16, v{10+i}")
        L(f"v_and_b32 v{101+2*i}, 0xffff0000, v{10+i}")
    for i in range(16):
        L(f"v_lshlrev_b32 v{160+2*i}, 16, v{32+i}")
        L(f"v_and_b32 v{161+2*i}, 0xffff0000, v{32+i}")
    L("v_lshlrev_b32 v9, 4, v0")
    L(f"v_sub_u32 v9, {KL + 2064*2 - 14}, v9")
    for r in range(8):
        for c in range(4):
            a, p = 200, 201
            L(f"v_mul_f32 v{a}, v{100+4*r+c}, v{72+4*c+3}"); rbf(a, a)
            for tt in range(1, 4):
                L(f"v_mul_f32 v{p}, v{100+4*(r+tt)+c}, v{72+4*c+3-tt}"); rbf(p, p)
                L(f"v_add_f32 v{a}, v{a}, v{p}"); rbf(a, a)
            L(f"v_mul_f32 v{a}, v{a}, v{160+4*r+c}")
            L(f"v_cvt_pk_bf16_f32 v{a}, v{a}, v{a}")
            L(f"ds_write_b16 v9, v{a} offset:{c*PW + (7-r)*2}")
    L("s_waitcnt lgkmcnt(0)")
    L("s_barrier")
    L("v_and_b32 v10, 15, v5")
    L("v_lshrrev_b32 v11, 4, v5")
    L("v_lshlrev_b32 v12, 1, v10")
    L("v_lshl_add_u32 v12, v11, 4, v12")
    L("v_add_u32 v12, v7, v12")
    L("v_lshlrev_b32 v13, 5, v10")
    L("v_lshlrev_b32 v14, 4, v11")
    L("v_sub_u32 v13, v14, v13")
    L("v_add_u32 v13, v7, v13")
    for i in range(32): L(f"v_mov_b32 v{16+i}, 0")
    L("s_mov_b32 s41, 0")
    e(f"{name}_rl:")
    for v in range(-7, 2):
        L(f"ds_read_b128 v[{48+4*(v+7)}:{51+4*(v+7)}], v13 offset:{KL + 4096 + 512*v}")
    for m in range(9):
        L(f"ds_read_b128 v[{84+4*m}:{87+4*m}], v12 offset:{512*m}")
    for m in range(9):
        L(f"s_waitcnt lgkmcnt({8-m})")
        for q in range(max(0, m-1), 8):
            v = m - q
            L(f"v_mfma_f32_16x16x32_bf16 v[{16+4*q}:{19+4*q}], v[{84+4*m}:{87+4*m}], v[{48+4*(v+7)}:{51+4*(v+7)}], v[{16+4*q}:{19+4*q}]")
    L("v_add_u32 v12, 64, v12")
    L("v_add_u32 v13, 64, v13")
    L("s_add_u32 s41, s41, 1")
    L("s_cmp_lt_u32 s41, 8")
    L(f"s_cbranch_scc1 {name}_rl")
    L("v_lshl_add_u32 v6, s2, 2, v4")
    L("v_lshlrev_b32 v6, 1, v6")
    L("buffer_load_ushort v15, v6, s[24:27], 0 offen")
    L("v_lshlrev_b32 v10, 4, v10")
    L("v_lshl_add_u32 v10, v11, 2, v10")
    L("v_lshlrev_b32 v11, 1, v10")
    L(f"v_sub_u32 v11, {KL + 2061*2 - 7*512}, v11")
    L("v_add_u32 v11, v7, v11")
    L("v_lshlrev_b32 v12, 3, v10")
    L("v_lshl_add_u32 v12, v4, 1, v12")
    L("s_waitcnt vmcnt(0)")
    L("v_lshlrev_b32 v15, 16, v15")
    L("s_nop 7")
    for q in range(8):
        L(f"ds_read_b64 v[48:49], v11 offset:{(7-q)*512}")
        L("s_waitcnt lgkmcnt(0)")
        L("v_and_b32 v50, 0xffff0000, v49"); L("v_lshlrev_b32 v51, 16, v49")
        L("v_and_b32 v52, 0xffff0000, v48"); L("v_lshlrev_b32 v53, 16, v48")
        for i in range(4):
            L(f"v_mul_f32 v{50+i}, v{50+i}, v15"); rbf(50+i, 50+i)
            rbf(16+4*q+i, 16+4*q+i)
            L(f"v_add_f32 v{50+i}, v{50+i}, v{16+4*q+i}")
            L(f"v_cvt_pk_bf16_f32 v{50+i}, v{50+i}, v{50+i}")
            L(f"ds_write_b16 v12, v{50+i} offset:{YS + q*2048 + i*8}")
    L("s_waitcnt lgkmcnt(0)")
    L("s_barrier")
    L("v_lshlrev_b32 v1, 3, v0")
    L("v_mul_u32_u24 v2, 1280, v0")
    L("v_add_u32 v2, s3, v2")
    for i in range(8):
        L(f"ds_read_b64 v[{10+2*i}:{11+2*i}], v1 offset:{YS + i*2048}")
    L("s_waitcnt lgkmcnt(0)")
    for i in range(8):
        L(f"buffer_store_dwordx2 v[{10+2*i}:{11+2*i}], v2, s[36:39], 0 offen")
        L(f"v_add_u32 v2, {256*1280}, v2")
    L("s_endpgm")
    e(f"{name}_pack:")
    L("s_load_dwordx4 s[4:7], s[0:1], 56")
    L("s_load_dwordx2 s[28:29], s[0:1], 72")
    L("s_load_dwordx2 s[34:35], s[0:1], 96")
    L("v_lshrrev_b32 v4, 6, v0")
    L("s_nop 1")
    L("v_readfirstlane_b32 s3, v4")
    L(f"s_sub_u32 s40, s2, {NCONV}")
    L("s_lshl_b32 s40, s40, 2")
    L("s_add_u32 s40, s40, s3")
    L("s_lshl_b32 s40, s40, 2")
    L("v_and_b32 v5, 31, v0")
    L("v_bfe_u32 v6, v0, 5, 1")
    L("s_waitcnt lgkmcnt(0)")
    srd(16, 34, 35, 0, WD_OFF + WD_SZ)
    L("s_lshl_b32 s47, s40, 10")
    L("s_cmp_ge_u32 s40, 4320")
    L(f"s_cbranch_scc1 {name}_pd")
    L(f"s_mul_hi_u32 s41, s40, {(2**32+39)//40}")
    L("s_mul_i32 s42, s41, 40")
    L("s_sub_u32 s42, s40, s42")
    L("s_and_b32 s43, s41, 1")
    L("s_cmp_eq_u32 s43, 0")
    L("s_cselect_b32 s44, s4, s6")
    L("s_cselect_b32 s45, s5, s7")
    srd(8, 44, 45, 0, D*F*2)
    L("s_lshr_b32 s43, s41, 1")
    L("s_lshl_b32 s43, s43, 5")
    L("s_movk_i32 s46, 3456")
    L(f"s_branch {name}_pgo")
    e(f"{name}_pd:")
    L("s_sub_u32 s40, s40, 4320")
    L(f"s_mul_hi_u32 s41, s40, {(2**32+107)//108}")
    L("s_mul_i32 s42, s41, 108")
    L("s_sub_u32 s42, s40, s42")
    srd(8, 28, 29, 0, D*F*2)
    L("s_lshl_b32 s43, s41, 5")
    L("s_movk_i32 s46, 1280")
    L("s_lshl_b32 s47, s40, 10")
    L(f"s_add_u32 s47, s47, {WD_OFF}")
    e(f"{name}_pgo:")
    L("s_lshl_b32 s42, s42, 4")
    L("v_lshl_add_u32 v6, v6, 3, s42")
    L("v_mul_lo_u32 v6, v6, s46")
    L("v_add_u32 v5, s43, v5")
    L("v_lshl_add_u32 v6, v5, 1, v6")
    L("s_lshl_b32 s48, s46, 3")
    for j in range(4):
      for i in range(4):
        L(f"buffer_load_ushort v{10+4*j+i}, v6, s[8:11], 0 offen")
        L("v_add_u32 v6, s46, v6")
        L(f"buffer_load_ushort v{30+4*j+i}, v6, s[8:11], 0 offen")
        L("v_add_u32 v6, s46, v6")
      L("v_add_u32 v6, s48, v6")
    L("v_and_b32 v7, 63, v0")
    L("v_lshlrev_b32 v7, 4, v7")
    L("s_waitcnt vmcnt(0)")
    for i in range(16): L(f"v_lshl_or_b32 v{10+i}, v{30+i}, 16, v{10+i}")
    for j in range(4): L(f"buffer_store_dwordx4 v[{10+4*j}:{13+4*j}], v7, s[16:19], s47 offen offset:{1024*j}")
    e(f"{name}_end:")
    L("s_endpgm")
    kdesc(name, 208)
    return (NCONV + NPACK, 256, 4 * PW + 16384)

def dpp_sum(v):
    for r in (8, 4, 2, 1):
        L("s_nop 1")
        L(f"v_add_f32_dpp v{v}, v{v}, v{v} row_ror:{r} row_mask:0xf bank_mask:0xf")

def ln_core(x0):
    L(f"v_mov_b32 v90, v{x0}")
    for i in range(1, 40): L(f"v_add_f32 v90, v90, v{x0+i}")
    dpp_sum(90)
    L(f"v_mul_f32 v90, {1.0/640!r}, v90")
    L("v_mov_b32 v91, 0")
    for i in range(40):
        L(f"v_sub_f32 v92, v{x0+i}, v90")
        L("v_fmac_f32 v91, v92, v92")
    dpp_sum(91)
    L(f"v_mul_f32 v91, {1.0/640!r}, v91")
    rbf(91, 91)
    L("v_add_f32 v91, 0x3727c5ac, v91"); rbf(91, 91)
    L("v_sqrt_f32 v91, v91"); L("s_nop 0"); rbf(91, 91)
    L("v_rcp_f32 v91, v91")
    rbf(90, 90)
    for i in range(40):
        L(f"v_sub_f32 v{100+i}, v{x0+i}, v90"); rbf(100+i, 100+i)
        L(f"v_mul_f32 v{100+i}, v{100+i}, v91"); rbf(100+i, 100+i)

def gen_ln(name, in_k, in_off, out_off):
    kbegin(name)
    L("s_cmp_ge_u32 s2, 512")
    L(f"s_cbranch_scc1 {name}_end")
    L(f"s_load_dwordx2 s[4:5], s[0:1], {in_k}")
    L("s_load_dwordx2 s[6:7], s[0:1], 96")
    L("v_lshrrev_b32 v1, 4, v0")
    L("v_and_b32 v2, 15, v0")
    L("v_lshl_add_u32 v1, s2, 2, v1")
    L("v_mul_u32_u24 v3, 1280, v1")
    L("v_lshl_add_u32 v3, v2, 4, v3")
    L("s_waitcnt lgkmcnt(0)")
    srd(8, 4, 5, in_off, XB); srd(12, 6, 7, Y_OFF, XB); srd(16, 6, 7, out_off, XB); srd(20, 6, 7, XN_OFF, XB)
    for i in range(5):
        L(f"buffer_load_dwordx4 v[{140+4*i}:{143+4*i}], v3, s[8:11], 0 offen offset:{256*i}")
    for i in range(5):
        L(f"buffer_load_dwordx4 v[{160+4*i}:{163+4*i}], v3, s[12:15], 0 offen offset:{256*i}")
    L("s_waitcnt vmcnt(5)")
    for i in range(20):
        L(f"v_lshlrev_b32 v{10+2*i}, 16, v{140+i}")
        L(f"v_and_b32 v{11+2*i}, 0xffff0000, v{140+i}")
    ln_core(10)
    L("s_waitcnt vmcnt(0)")
    for i in range(20):
        for h in range(2):
            j = 2*i+h
            if h == 0: L(f"v_lshlrev_b32 v92, 16, v{160+i}")
            else: L(f"v_and_b32 v92, 0xffff0000, v{160+i}")
            L(f"v_mul_f32 v92, v92, v{100+j}"); rbf(92, 92)
            L(f"v_add_f32 v{10+j}, v{10+j}, v92"); rbf(10+j, 10+j)
        L(f"v_cvt_pk_bf16_f32 v{140+i}, v{10+2*i}, v{11+2*i}")
    for i in range(5):
        L(f"buffer_store_dwordx4 v[{140+4*i}:{143+4*i}], v3, s[16:19], 0 offen offset:{256*i}")
    ln_core(10)
    for i in range(20):
        L(f"v_cvt_pk_bf16_f32 v{160+i}, v{100+2*i}, v{101+2*i}")
    L("v_lshrrev_b32 v4, 5, v1")
    L("v_mul_u32_u24 v4, 40960, v4")
    L("v_and_b32 v5, 31, v1")
    L("v_lshl_add_u32 v4, v5, 4, v4")
    L("v_lshl_add_u32 v4, v2, 9, v4")
    for i in range(5):
        L(f"buffer_store_dwordx4 v[{160+4*i}:{163+4*i}], v4, s[20:23], 0 offen")
        L("v_add_u32 v4, 8192, v4")
    e(f"{name}_end:")
    L("s_endpgm")
    kdesc(name, 184)
    return (512, 64, 0)

def gen_gemm(name, kind, res_off=None, out_ws=True, out_off=None):
    gu = kind == "gu"
    KS = 40 if gu else 108
    TN = 4 if gu else 2
    NCT = 27 if gu else 10
    NWG = 16 * NCT
    STG = (4 + TN) * 4096
    NS = KS // 4
    WN = TN // 2
    NDMA = 4 + TN
    kbegin(name)
    L(f"s_cmp_ge_u32 s2, {NWG}")
    L(f"s_cbranch_scc1 {name}_end")
    L("s_load_dwordx2 s[4:5], s[0:1], 96")
    L("s_load_dwordx2 s[6:7], s[0:1], 80")
    L("s_lshr_b32 s3, s2, 3")
    L(f"s_mul_hi_u32 s24, s3, {(2**32+NCT-1)//NCT}")
    L(f"s_mul_i32 s25, s24, {NCT}")
    L("s_sub_u32 s25, s3, s25")
    L("s_and_b32 s3, s2, 7")
    L("s_lshl_b32 s3, s3, 1")
    L("s_add_u32 s24, s24, s3")
    L("v_lshrrev_b32 v4, 6, v0")
    L("v_and_b32 v5, 63, v0")
    L("v_lshlrev_b32 v5, 4, v5")
    L("v_readfirstlane_b32 s26, v4")
    L("s_waitcnt lgkmcnt(0)")
    if gu:
        srd(8, 4, 5, XN_OFF, XB); srd(12, 4, 5, WGU_OFF, WGU_SZ); srd(16, 4, 5, H_OFF, H_SZ)
    else:
        srd(8, 4, 5, H_OFF, H_SZ); srd(12, 4, 5, WD_OFF, WD_SZ)
        if out_ws: srd(16, 4, 5, out_off, XB)
        else: srd(16, 6, 7, 0, XB)
        srd(20, 4, 5, res_off, XB)
    L("s_lshl_b32 s27, s24, 2"); L("s_add_u32 s27, s27, s26"); L(f"s_mul_i32 s27, s27, {KS*1024}")
    L("v_add_u32 v1, s27, v5")
    L("s_lshl_b32 s28, s26, 12")
    if gu:
        L("s_lshl_b32 s27, s25, 2"); L("s_add_u32 s27, s27, s26"); L(f"s_mul_i32 s27, s27, {KS*1024}")
        L("s_add_u32 s29, s28, 16384")
    else:
        L("s_and_b32 s30, s26, 1"); L("s_lshr_b32 s31, s26, 1")
        L("s_lshl_b32 s27, s25, 1"); L("s_add_u32 s27, s27, s30"); L(f"s_mul_i32 s27, s27, {KS*1024}")
        L("s_lshl_b32 s31, s31, 11"); L("s_add_u32 s27, s27, s31")
        L("s_lshl_b32 s29, s30, 12"); L("s_add_u32 s29, s29, s31"); L("s_add_u32 s29, s29, 16384")
    L("v_add_u32 v2, s27, v5")
    L("s_lshr_b32 s30, s26, 1"); L("s_and_b32 s31, s26, 1")
    L("s_lshl_b32 s32, s30, 13")
    L("v_add_u32 v6, s32, v5")
    L(f"s_mul_i32 s32, s31, {WN*4096}"); L("s_add_u32 s32, s32, 16384")
    L("v_add_u32 v7, s32, v5")
    ACC = 64
    for i in range(32 * WN): L(f"v_mov_b32 v{ACC+i}, 0")
    L("s_mov_b32 s33, 0")
    L("s_mov_b32 s34, 0")
    def issue():
        L("s_add_u32 m0, s34, s28")
        L("s_nop 0")
        for kk in range(4):
            L(f"buffer_load_dwordx4 v1, s[8:11], s33 offen offset:{kk*1024} lds")
        L("s_add_u32 m0, s34, s29")
        L("s_nop 0")
        for kk in range(TN):
            L(f"buffer_load_dwordx4 v2, s[12:15], s33 offen offset:{kk*1024} lds")
        L("s_add_u32 s33, s33, 4096")
        L(f"s_add_u32 s34, s34, {STG}")
        L(f"s_cmp_eq_u32 s34, {3*STG}")
        L("s_cselect_b32 s34, 0, s34")
    issue(); issue()
    L("s_mov_b32 s35, 0")
    L("s_mov_b32 s36, 0")
    e(f"{name}_loop:")
    L(f"s_waitcnt vmcnt({NDMA})")
    L("s_barrier")
    issue()
    L("v_add_u32 v8, s35, v6")
    L("v_add_u32 v9, s35, v7")
    NF = 2 + WN
    def rd(kk):
        b = 10 + (kk % 2) * NF * 4
        for r in range(2):
            L(f"ds_read_b128 v[{b+4*r}:{b+4*r+3}], v8 offset:{r*4096+kk*1024}")
        for n in range(WN):
            L(f"ds_read_b128 v[{b+8+4*n}:{b+8+4*n+3}], v9 offset:{n*4096+kk*1024}")
    rd(0)
    for kk in range(4):
        if kk < 3:
            rd(kk+1); L(f"s_waitcnt lgkmcnt({NF})")
        else:
            L("s_waitcnt lgkmcnt(0)")
        b = 10 + (kk % 2) * NF * 4
        for r in range(2):
            for n in range(WN):
                a = ACC + 16 * (r * WN + n)
                L(f"v_mfma_f32_32x32x16_bf16 v[{a}:{a+15}], v[{b+8+4*n}:{b+8+4*n+3}], v[{b+4*r}:{b+4*r+3}], v[{a}:{a+15}]")
    L(f"s_add_u32 s35, s35, {STG}")
    L(f"s_cmp_eq_u32 s35, {3*STG}")
    L("s_cselect_b32 s35, 0, s35")
    L("s_add_u32 s36, s36, 1")
    L(f"s_cmp_lt_u32 s36, {NS}")
    L(f"s_cbranch_scc1 {name}_loop")
    L("s_nop 15")
    L("v_and_b32 v10, 31, v0")
    L("v_bfe_u32 v11, v0, 5, 1")
    if gu:
        for r in range(2):
            L("s_lshl_b32 s40, s24, 2"); L("s_lshl_b32 s41, s30, 1"); L("s_add_u32 s40, s40, s41")
            L(f"s_add_u32 s40, s40, {r}"); L("s_mul_i32 s40, s40, 108")
            L("s_lshl_b32 s41, s25, 2"); L("s_add_u32 s40, s40, s41"); L("s_lshl_b32 s41, s31, 1"); L("s_add_u32 s40, s40, s41")
            L("s_lshl_b32 s40, s40, 10")
            L("v_lshlrev_b32 v12, 4, v10")
            L("v_lshl_add_u32 v12, v11, 3, v12")
            g0 = ACC + 32 * r; u0 = g0 + 16
            for i in range(16):
                rbf(g0+i, g0+i); rbf(u0+i, u0+i)
                L(f"v_mul_f32 v{g0+i}, 0xbfb8aa3b, v{g0+i}")
                L(f"v_exp_f32 v{g0+i}, v{g0+i}")
                L("s_nop 0")
                L(f"v_add_f32 v{g0+i}, 1.0, v{g0+i}")
                L(f"v_rcp_f32 v{g0+i}, v{g0+i}")
                L("s_nop 0")
                rbf(g0+i, g0+i)
                L(f"v_mul_f32 v{g0+i}, v{g0+i}, v{u0+i}")
            for g4 in range(4):
                L(f"v_cvt_pk_bf16_f32 v14, v{g0+4*g4}, v{g0+4*g4+1}")
                L(f"v_cvt_pk_bf16_f32 v15, v{g0+4*g4+2}, v{g0+4*g4+3}")
                L(f"buffer_store_dwordx2 v[14:15], v12, s[16:19], s40 offen offset:{(g4//2)*1024+(g4%2)*512}")
                L("s_nop 1")
    else:
        for r in range(2):
            L("s_lshl_b32 s40, s24, 7"); L("s_lshl_b32 s41, s30, 6"); L("s_add_u32 s40, s40, s41")
            L(f"s_add_u32 s40, s40, {32*r}")
            L("v_add_u32 v12, s40, v10")
            L("v_mul_u32_u24 v12, 1280, v12")
            L("s_lshl_b32 s40, s25, 7"); L("s_lshl_b32 s41, s31, 6"); L("s_add_u32 s40, s40, s41")
            L("v_lshl_add_u32 v13, v11, 3, s40")
            L("v_add_u32 v12, v12, v13")
            a0 = ACC + 16 * r
            for g4 in range(4):
                L(f"buffer_load_dwordx2 v[{16+2*g4}:{17+2*g4}], v12, s[20:23], 0 offen offset:{16*g4}")
            for g4 in range(4):
                L(f"s_waitcnt vmcnt({3-g4})" if r == 0 else f"s_waitcnt vmcnt({min(3-g4, 3)})")
                for i in range(4):
                    rbf(a0+4*g4+i, a0+4*g4+i)
                    if i % 2 == 0: L(f"v_lshlrev_b32 v14, 16, v{16+2*g4+i//2}")
                    else: L(f"v_and_b32 v14, 0xffff0000, v{16+2*g4+i//2}")
                    L(f"v_add_f32 v{a0+4*g4+i}, v{a0+4*g4+i}, v14")
                L(f"v_cvt_pk_bf16_f32 v{24+2*g4}, v{a0+4*g4}, v{a0+4*g4+1}")
                L(f"v_cvt_pk_bf16_f32 v{25+2*g4}, v{a0+4*g4+2}, v{a0+4*g4+3}")
            for g4 in range(4):
                L(f"buffer_store_dwordx2 v[{24+2*g4}:{25+2*g4}], v12, s[16:19], 0 offen offset:{16*g4}")
            L("s_waitcnt vmcnt(0)")
    e(f"{name}_end:")
    L("s_endpgm")
    kdesc(name, ACC + 32 * WN)
    return (NWG, 256, 3 * STG)

launches = []
def add(n, cfg): launches.append((n, cfg))
add("k0_kernel", gen_prep("k0_kernel"))
add("k1_kernel", gen_ln("k1_kernel", 0, 0, X1_OFF))
add("k2_kernel", gen_gemm("k2_kernel", "gu"))
add("k3_kernel", gen_gemm("k3_kernel", "dn", res_off=X1_OFF, out_ws=True, out_off=X2_OFF))
add("k4_kernel", gen_ln("k4_kernel", 96, X2_OFF, X3_OFF))
add("k5_kernel", gen_gemm("k5_kernel", "gu"))
add("k6_kernel", gen_gemm("k6_kernel", "dn", res_off=X3_OFF, out_ws=False))
hdr = [f"; @launch kernel={n} grid=({g},1,1) block=({b},1,1) lds={l}" for n, (g, b, l) in launches]
txt = "\n".join(hdr) + '\n.amdgcn_target "amdgcn-amd-amdhsa--gfx950"\n.text\n' + "\n".join(out) + '\n.section .rodata,"a"\n' + "\n".join(".p2align 6\n" + d for d in descs) + "\n"
open(f"cdna_kernels/{NAME}.s", "w").write(txt)
```

```python
NAME = "interleave_layers__ssm_conv_h3__glu_gated_glu__prompt"
S, D, F = 2048, 640, 1728
XB = S * D * 2
S40 = 40*1024+1280; S108 = 108*1024+1280
WGU_OFF = 0;            WGU_SZ = 108 * S40
WD_OFF = 0x480000;      WD_SZ = 20 * S108
Y_OFF = 0x700000
X1_OFF = 0xA00000
X2_OFF = 0xD00000
X3_OFF = 0x1000000
XN_OFF = 0x1300000
H_OFF = 0x1600000;      H_SZ = 64 * S108
XN_SZ = 64 * S40
out = []
def e(s): out.append(s)
def L(s): out.append("    " + s)

def srd(d, lo, hi, off, size):
    L(f"s_add_u32 s{d}, s{lo}, {off & 0xffffffff}")
    L(f"s_addc_u32 s{d+1}, s{hi}, 0")
    L(f"s_and_b32 s{d+1}, s{d+1}, 0xffff")
    L(f"s_mov_b32 s{d+2}, {size}")
    L(f"s_mov_b32 s{d+3}, 0x00020000")

def kbegin(name):
    e(f".globl {name}\n.p2align 8\n.type {name},@function\n{name}:")
descs = []
def kdesc(name, vgpr, sgpr=102):
    a = (vgpr + 3) // 4 * 4
    descs.append(f""".amdhsa_kernel {name}
  .amdhsa_next_free_vgpr {vgpr}
  .amdhsa_next_free_sgpr {sgpr}
  .amdhsa_accum_offset {a}
  .amdhsa_group_segment_fixed_size 0
  .amdhsa_kernarg_size 104
  .amdhsa_user_sgpr_count 2
  .amdhsa_user_sgpr_kernarg_segment_ptr 1
  .amdhsa_system_sgpr_workgroup_id_x 1
.end_amdhsa_kernel""")

import os
STAMP = bool(os.environ.get("STAMP"))
def stamp(i):
    if not STAMP: return
    L("s_waitcnt vmcnt(0) lgkmcnt(0)")
    L(f"s_memtime s[{60+2*i}:{61+2*i}]")
    L("s_waitcnt lgkmcnt(0)")
def stamp_out(n):
    if not STAMP: return
    L("s_load_dwordx2 s[80:81], s[0:1], 88")
    L("s_waitcnt lgkmcnt(0)")
    srd(84, 80, 81, 0, 256)
    L("v_mov_b32 v250, 0")
    for i in range(n):
        L(f"s_sub_u32 s90, s{60+2*i}, s60")
        L("v_mov_b32 v251, s90")
        L("s_cmp_eq_u32 s2, 0")
        L(f"s_cbranch_scc0 .Lst{len(out)}")
        L(f"buffer_store_dword v251, v250, s[84:87], 0 offen offset:{4*i}")
        e(f".Lst{len(out)-2}:")
def rbf(dst, src):
    L(f"v_cvt_pk_bf16_f32 v{dst}, v{src}, v{src}")
    L(f"v_lshlrev_b32 v{dst}, 16, v{dst}")

KVB_OFF = 0x1E00000; KP_OFF = 0x2100000; KPR = 9280
def gen_pre(name):
    NKV, NKP, NPACK = 320, 160, 405
    NCONV = NKV + NKP
    kbegin(name)
    X = os.environ.get("KAX", "")
    L(f"s_cmp_ge_u32 s2, {NCONV+NPACK}")
    L(f"s_cbranch_scc1 {name}_end")
    L(f"s_cmp_ge_u32 s2, {NCONV}")
    L(f"s_cbranch_scc1 {name}_" + ("end" if "p" in X else "pack"))
    L(f"s_cmp_ge_u32 s2, {NKV}")
    L(f"s_cbranch_scc1 {name}_" + ("end" if "k" in X else "kp"))
    if "v" in X: L(f"s_branch {name}_end")
    L("s_load_dwordx4 s[4:7], s[0:1], 8")
    L("s_load_dwordx2 s[28:29], s[0:1], 24")
    L("s_load_dwordx2 s[34:35], s[0:1], 96")
    L(f"s_mul_hi_u32 s40, s2, {(2**32+9)//10}")
    L("s_mul_i32 s41, s40, 10"); L("s_sub_u32 s41, s2, s41")
    L("v_lshrrev_b32 v1, 3, v0"); L("v_and_b32 v2, 7, v0")
    L("v_lshl_add_u32 v1, s40, 6, v1")
    L("v_lshl_add_u32 v2, s41, 3, v2")
    L("v_mul_u32_u24 v3, 1280, v1")
    L("v_lshl_add_u32 v3, v2, 4, v3")
    L("v_lshlrev_b32 v4, 6, v2")
    L("s_waitcnt lgkmcnt(0)")
    srd(8, 4, 5, 0, XB); srd(12, 6, 7, 0, XB); srd(16, 28, 29, 0, D*8); srd(20, 34, 35, KVB_OFF, XB)
    for i in range(4): L(f"buffer_load_dwordx4 v[{8+4*i}:{11+4*i}], v4, s[16:19], 0 offen offset:{16*i}")
    for p in range(2):
        L("v_subrev_u32 v5, 3840, v3")
        for i in range(4):
            L(f"buffer_load_dwordx4 v[{24+20*p+4*i}:{27+20*p+4*i}], v5, s[8:11], 0 offen")
            L("v_add_u32 v5, 1280, v5")
        L(f"buffer_load_dwordx4 v[{40+20*p}:{43+20*p}], v3, s[12:15], 0 offen")
        L(f"v_add_u32 v3, {32*1280}, v3")
    L("v_lshlrev_b32 v6, 15, v2")
    L("v_lshl_add_u32 v6, v1, 3, v6")
    L("s_waitcnt vmcnt(0)")
    for p in range(2):
        for c in range(8):
            def ext(dst, reg, hi):
                L(f"v_and_b32 v{dst}, 0xffff0000, v{reg}" if hi else f"v_lshlrev_b32 v{dst}, 16, v{reg}")
            for tt in range(4):
                tap = 3 - tt
                ext(70, 8+2*c+tap//2, tap % 2)
                ext(71, 24+20*p+4*tt+c//2, c % 2)
                if tt == 0:
                    L("v_mul_f32 v72, v70, v71"); rbf(72, 72)
                else:
                    L("v_mul_f32 v73, v70, v71"); rbf(73, 73)
                    L("v_add_f32 v72, v72, v73"); rbf(72, 72)
            ext(71, 40+20*p+c//2, c % 2)
            L(f"v_mul_f32 v{64+c%2}, v72, v71")
            if c % 2: L(f"v_cvt_pk_bf16_f32 v{66+c//2}, v64, v65")
        L(f"buffer_store_dwordx2 v[66:67], v6, s[20:23], 0 offen offset:{256*p}")
        L("v_add_u32 v7, 16384, v6")
        L(f"buffer_store_dwordx2 v[68:69], v7, s[20:23], 0 offen offset:{256*p}")
        L("s_nop 1")
    L("s_endpgm")
    e(f"{name}_kp:")
    L("s_load_dwordx2 s[4:5], s[0:1], 32")
    L("s_load_dwordx2 s[34:35], s[0:1], 96")
    L(f"s_sub_u32 s40, s2, {NKV}")
    L("v_lshrrev_b32 v1, 6, v0"); L("v_and_b32 v2, 63, v0")
    L("v_lshl_add_u32 v1, s40, 2, v1")
    L("v_lshlrev_b32 v3, 12, v1"); L("v_lshl_add_u32 v3, v2, 4, v3")
    L(f"v_mul_u32_u24 v4, {KPR}, v1"); L("v_lshl_add_u32 v4, v2, 4, v4")
    L("s_waitcnt lgkmcnt(0)")
    srd(8, 4, 5, 0, D*S*2); srd(12, 34, 35, KP_OFF, D*KPR)
    for i in range(4): L(f"buffer_load_dwordx4 v[{8+4*i}:{11+4*i}], v3, s[8:11], 0 offen offset:{1024*i}")
    for i in range(4): L(f"v_mov_b32 v{24+i}, 0")
    L("v_cmp_gt_u32 vcc, 33, v2")
    L("s_and_saveexec_b64 s[20:21], vcc")
    L("v_add_u32 v5, 4096, v4")
    L("buffer_store_dwordx4 v[24:27], v5, s[12:15], 0 offen offset:16")
    L("v_add_u32 v5, 4640, v5")
    L("buffer_store_dwordx4 v[24:27], v5, s[12:15], 0 offen offset:16")
    L("v_cmp_gt_u32 vcc, 2, v2")
    L("s_and_b64 exec, exec, vcc")
    L("buffer_store_dwordx4 v[24:27], v4, s[12:15], 0 offen")
    L("v_add_u32 v5, 4640, v4")
    L("buffer_store_dwordx4 v[24:27], v5, s[12:15], 0 offen")
    L("s_mov_b64 exec, s[20:21]")
    L("s_waitcnt vmcnt(0)")
    L("v_add_u32 v5, 4640, v4")
    for i in range(4): L(f"buffer_store_dwordx4 v[{8+4*i}:{11+4*i}], v4, s[12:15], 0 offen offset:{32+1024*i}")
    for i in range(4): L(f"buffer_store_dwordx4 v[{8+4*i}:{11+4*i}], v5, s[12:15], 0 offen offset:{30+1024*i}")
    L("s_endpgm")
    e(f"{name}_pack:")
    L("s_load_dwordx4 s[4:7], s[0:1], 56")
    L("s_load_dwordx2 s[28:29], s[0:1], 72")
    L("s_load_dwordx2 s[34:35], s[0:1], 96")
    L("v_lshrrev_b32 v4, 6, v0")
    L("s_nop 1")
    L("v_readfirstlane_b32 s3, v4")
    L(f"s_sub_u32 s40, s2, {NCONV}")
    L("s_lshl_b32 s40, s40, 2")
    L("s_add_u32 s40, s40, s3")
    L("s_lshl_b32 s40, s40, 2")
    L("v_and_b32 v5, 31, v0")
    L("v_bfe_u32 v6, v0, 5, 1")
    L("s_waitcnt lgkmcnt(0)")
    srd(16, 34, 35, 0, WD_OFF + WD_SZ)
    L("s_lshl_b32 s47, s40, 10")
    L("s_cmp_ge_u32 s40, 4320")
    L(f"s_cbranch_scc1 {name}_pd")
    L(f"s_mul_hi_u32 s41, s40, {(2**32+39)//40}")
    L("s_mul_i32 s42, s41, 40")
    L("s_sub_u32 s42, s40, s42")
    L(f"s_mul_i32 s47, s41, {S40}"); L("s_lshl_b32 s49, s42, 10"); L("s_add_u32 s47, s47, s49")
    L("s_and_b32 s43, s41, 1")
    L("s_cmp_eq_u32 s43, 0")
    L("s_cselect_b32 s44, s4, s6")
    L("s_cselect_b32 s45, s5, s7")
    srd(8, 44, 45, 0, D*F*2)
    L("s_lshr_b32 s43, s41, 1")
    L("s_lshl_b32 s43, s43, 5")
    L("s_movk_i32 s46, 3456")
    L(f"s_branch {name}_pgo")
    e(f"{name}_pd:")
    L("s_sub_u32 s40, s40, 4320")
    L(f"s_mul_hi_u32 s41, s40, {(2**32+107)//108}")
    L("s_mul_i32 s42, s41, 108")
    L("s_sub_u32 s42, s40, s42")
    srd(8, 28, 29, 0, D*F*2)
    L("s_lshl_b32 s43, s41, 5")
    L("s_movk_i32 s46, 1280")
    L(f"s_mul_i32 s47, s41, {S108}"); L("s_lshl_b32 s49, s42, 10"); L("s_add_u32 s47, s47, s49")
    L(f"s_add_u32 s47, s47, {WD_OFF}")
    e(f"{name}_pgo:")
    L("s_lshl_b32 s42, s42, 4")
    L("v_lshl_add_u32 v6, v6, 3, s42")
    L("v_mul_lo_u32 v6, v6, s46")
    L("v_add_u32 v5, s43, v5")
    L("v_lshl_add_u32 v6, v5, 1, v6")
    L("s_lshl_b32 s48, s46, 3")
    for j in range(4):
      for i in range(4):
        L(f"buffer_load_ushort v{10+4*j+i}, v6, s[8:11], 0 offen")
        L("v_add_u32 v6, s46, v6")
        L(f"buffer_load_ushort v{30+4*j+i}, v6, s[8:11], 0 offen")
        L("v_add_u32 v6, s46, v6")
      L("v_add_u32 v6, s48, v6")
    L("v_and_b32 v7, 63, v0")
    L("v_lshlrev_b32 v7, 4, v7")
    L("s_waitcnt vmcnt(0)")
    for i in range(16): L(f"v_lshl_or_b32 v{10+i}, v{30+i}, 16, v{10+i}")
    for j in range(4): L(f"buffer_store_dwordx4 v[{10+4*j}:{13+4*j}], v7, s[16:19], s47 offen offset:{1024*j}")
    e(f"{name}_end:")
    L("s_endpgm")
    kdesc(name, 80)
    return (NCONV + NPACK, 256, 0)

def gen_conv(name):
    XR = 5120; YS = 4 * XR
    kbegin(name)
    L("s_cmp_ge_u32 s2, 160")
    L(f"s_cbranch_scc1 {name}_end")
    stamp(0)
    L("s_load_dwordx2 s[32:33], s[0:1], 40")
    L("s_load_dwordx2 s[34:35], s[0:1], 96")
    L("v_lshlrev_b32 v1, 4, v0")
    for i in range(4): L(f"v_mov_b32 v{4+i}, 0")
    for i in range(5): L(f"ds_write_b128 v1, v[4:7] offset:{i*4096}")
    L("s_waitcnt lgkmcnt(0)")
    srd(8, 34, 35, KVB_OFF, XB); srd(20, 34, 35, KP_OFF, D*KPR); srd(24, 32, 33, 0, D*2); srd(36, 34, 35, Y_OFF, XB)
    L("s_lshl_b32 s3, s2, 14")
    L("v_add_u32 v2, s3, v1")
    for i in range(4): L(f"buffer_load_dwordx4 v[{8+4*i}:{11+4*i}], v2, s[8:11], 0 offen offset:{0}" if False else f"buffer_load_dwordx4 v[{8+4*i}:{11+4*i}], v2, s[8:11], s{44+i} offen") if False else None
    for i in range(4):
        L(f"buffer_load_dwordx4 v[{8+4*i}:{11+4*i}], v2, s[8:11], 0 offen")
        L("v_add_u32 v2, 4096, v2")
    L("v_lshrrev_b32 v4, 6, v0"); L("v_and_b32 v5, 63, v0")
    L(f"v_mul_u32_u24 v7, {XR}, v4")
    L("v_lshlrev_b32 v9, 2, v0")
    L(f"v_sub_u32 v3, {2064*2 - 2 - 3*1024}, v9")
    L("s_barrier")
    L("s_waitcnt vmcnt(0)")
    for i in range(4):
        for h in range(2):
            for c in range(4):
                reg = 8 + 4*i + 2*h + c//2
                if c % 2: L(f"ds_write_b16_d16_hi v3, v{reg} offset:{c*XR + (3-i)*1024 + (1-h)*2}")
                else: L(f"ds_write_b16 v3, v{reg} offset:{c*XR + (3-i)*1024 + (1-h)*2}")
    L("s_waitcnt lgkmcnt(0)")
    L("s_barrier")
    stamp(1)
    L("v_and_b32 v10, 15, v5")
    L("v_lshrrev_b32 v11, 4, v5")
    L("v_lshl_add_u32 v6, s2, 2, v4")
    L(f"v_mul_u32_u24 v12, {KPR}, v6")
    L("v_and_b32 v14, 1, v10")
    L("v_mul_u32_u24 v14, 4638, v14")
    L("v_add_u32 v12, v12, v14")
    L("v_lshl_add_u32 v12, v10, 1, v12")
    L("v_lshl_add_u32 v12, v11, 4, v12")
    L("v_lshlrev_b32 v13, 5, v10")
    L("v_lshlrev_b32 v14, 4, v11")
    L("v_sub_u32 v13, v14, v13")
    L("v_add_u32 v13, v7, v13")
    for i in range(32): L(f"v_mov_b32 v{16+i}, 0")
    L("s_mov_b32 s41, 0")
    def ald(b):
        for m in range(8): L(f"buffer_load_dwordx4 v[{b+4*m}:{b+3+4*m}], v12, s[20:23], 0 offen offset:{512*m}")
        L("v_add_u32 v15, 4096, v12")
        L(f"buffer_load_dwordx4 v[{b+32}:{b+35}], v15, s[20:23], 0 offen")
        L("v_add_u32 v12, 64, v12")
    ald(84)
    e(f"{name}_rl:")
    for half in range(2):
        cur = 84 + 36*half; nxt = 84 + 36*(1-half)
        for v in range(-7, 2):
            L(f"ds_read_b128 v[{48+4*(v+7)}:{51+4*(v+7)}], v13 offset:{4096 + 512*v}")
        ald(nxt)
        L("s_waitcnt lgkmcnt(0)")
        for m in range(9):
            L(f"s_waitcnt vmcnt({9+8-m})")
            for q in range(max(0, m-1), 8):
                v = m - q
                L(f"v_mfma_f32_16x16x32_bf16 v[{16+4*q}:{19+4*q}], v[{cur+4*m}:{cur+3+4*m}], v[{48+4*(v+7)}:{51+4*(v+7)}], v[{16+4*q}:{19+4*q}]")
        L("v_add_u32 v13, 64, v13")
    L("s_add_u32 s41, s41, 1")
    L("s_cmp_lt_u32 s41, 4")
    L(f"s_cbranch_scc1 {name}_rl")
    stamp(2)
    L("s_waitcnt vmcnt(0)")
    L("v_lshlrev_b32 v6, 1, v6")
    L("buffer_load_ushort v15, v6, s[24:27], 0 offen")
    L("v_lshlrev_b32 v10, 4, v10")
    L("v_lshl_add_u32 v10, v11, 2, v10")
    L("v_lshlrev_b32 v11, 1, v10")
    L(f"v_sub_u32 v11, {2060*2 - 7*512}, v11")
    L("v_add_u32 v11, v7, v11")
    L("v_lshlrev_b32 v12, 3, v10")
    L("v_lshl_add_u32 v12, v4, 1, v12")
    for q in range(8):
        L(f"ds_read_b64 v[{84+2*q}:{85+2*q}], v11 offset:{(7-q)*512}")
        L(f"ds_read_u16 v{100+q}, v11 offset:{(7-q)*512+8}")
    L("s_waitcnt vmcnt(0) lgkmcnt(0)")
    L("v_lshlrev_b32 v15, 16, v15")
    for q in range(8):
        L(f"v_lshlrev_b32 v50, 16, v{100+q}"); L(f"v_and_b32 v51, 0xffff0000, v{85+2*q}")
        L(f"v_lshlrev_b32 v52, 16, v{85+2*q}"); L(f"v_and_b32 v53, 0xffff0000, v{84+2*q}")
        for i in range(4):
            L(f"v_mul_f32 v{50+i}, v{50+i}, v15"); rbf(50+i, 50+i)
            rbf(16+4*q+i, 16+4*q+i)
            L(f"v_add_f32 v{50+i}, v{50+i}, v{16+4*q+i}")
            L(f"v_cvt_pk_bf16_f32 v{50+i}, v{50+i}, v{50+i}")
            L(f"ds_write_b16 v12, v{50+i} offset:{YS + q*2048 + i*8}")
    L("s_waitcnt lgkmcnt(0)")
    L("s_barrier")
    stamp(3)
    L("v_add_u32 v2, s3, v1")
    for i in range(4): L(f"ds_read_b128 v[{16+4*i}:{19+4*i}], v1 offset:{YS + i*4096}")
    L("s_waitcnt lgkmcnt(0)")
    for i in range(4):
        L(f"buffer_store_dwordx4 v[{16+4*i}:{19+4*i}], v2, s[36:39], 0 offen")
        L("v_add_u32 v2, 4096, v2")
    stamp(4)
    stamp_out(5)
    e(f"{name}_end:")
    L("s_endpgm")
    kdesc(name, 256 if STAMP else 160)
    return (160, 256, YS + 16384)

def dpp_sum(v):
    for r in (8, 4, 2, 1):
        L("s_nop 1")
        L(f"v_add_f32_dpp v{v}, v{v}, v{v} row_ror:{r} row_mask:0xf bank_mask:0xf")

def ln_core(x0):
    L(f"v_mov_b32 v90, v{x0}")
    for i in range(1, 40): L(f"v_add_f32 v90, v90, v{x0+i}")
    dpp_sum(90)
    L(f"v_mul_f32 v90, {1.0/640!r}, v90")
    L("v_mov_b32 v91, 0")
    for i in range(40):
        L(f"v_sub_f32 v92, v{x0+i}, v90")
        L("v_fmac_f32 v91, v92, v92")
    dpp_sum(91)
    L(f"v_mul_f32 v91, {1.0/640!r}, v91")
    rbf(91, 91)
    L("v_add_f32 v91, 0x3727c5ac, v91"); rbf(91, 91)
    L("v_sqrt_f32 v91, v91"); L("s_nop 0"); rbf(91, 91)
    L("v_rcp_f32 v91, v91")
    rbf(90, 90)
    for i in range(40):
        L(f"v_sub_f32 v{100+i}, v{x0+i}, v90"); rbf(100+i, 100+i)
        L(f"v_mul_f32 v{100+i}, v{100+i}, v91"); rbf(100+i, 100+i)

def gen_ln(name, in_k, in_off, out_off):
    kbegin(name)
    L("s_cmp_ge_u32 s2, 512")
    L(f"s_cbranch_scc1 {name}_end")
    L(f"s_load_dwordx2 s[4:5], s[0:1], {in_k}")
    L("s_load_dwordx2 s[6:7], s[0:1], 96")
    L("v_lshrrev_b32 v1, 4, v0")
    L("v_and_b32 v2, 15, v0")
    L("v_lshl_add_u32 v1, s2, 2, v1")
    L("v_mul_u32_u24 v3, 1280, v1")
    L("v_lshl_add_u32 v3, v2, 4, v3")
    L("s_waitcnt lgkmcnt(0)")
    srd(8, 4, 5, in_off, XB); srd(12, 6, 7, Y_OFF, XB); srd(16, 6, 7, out_off, XB); srd(20, 6, 7, XN_OFF, XN_SZ)
    for i in range(5):
        L(f"buffer_load_dwordx4 v[{140+4*i}:{143+4*i}], v3, s[8:11], 0 offen offset:{256*i}")
    L("v_lshlrev_b32 v6, 15, v2")
    L("v_lshl_add_u32 v6, v1, 3, v6")
    for i in range(5):
        L(f"buffer_load_dwordx2 v[{160+4*i}:{161+4*i}], v6, s[12:15], 0 offen")
        L("v_add_u32 v6, 16384, v6")
        L(f"buffer_load_dwordx2 v[{162+4*i}:{163+4*i}], v6, s[12:15], 0 offen")
        L(f"v_add_u32 v6, {31*16384}, v6")
    L("s_waitcnt vmcnt(10)")
    for i in range(20):
        L(f"v_lshlrev_b32 v{10+2*i}, 16, v{140+i}")
        L(f"v_and_b32 v{11+2*i}, 0xffff0000, v{140+i}")
    ln_core(10)
    L("s_waitcnt vmcnt(0)")
    for i in range(20):
        for h in range(2):
            j = 2*i+h
            if h == 0: L(f"v_lshlrev_b32 v92, 16, v{160+i}")
            else: L(f"v_and_b32 v92, 0xffff0000, v{160+i}")
            L(f"v_mul_f32 v92, v92, v{100+j}"); rbf(92, 92)
            L(f"v_add_f32 v{10+j}, v{10+j}, v92"); rbf(10+j, 10+j)
        L(f"v_cvt_pk_bf16_f32 v{140+i}, v{10+2*i}, v{11+2*i}")
    for i in range(5):
        L(f"buffer_store_dwordx4 v[{140+4*i}:{143+4*i}], v3, s[16:19], 0 offen offset:{256*i}")
    ln_core(10)
    for i in range(20):
        L(f"v_cvt_pk_bf16_f32 v{160+i}, v{100+2*i}, v{101+2*i}")
    L("v_lshrrev_b32 v4, 5, v1")
    L(f"v_mul_u32_u24 v4, {S40}, v4")
    L("v_and_b32 v5, 31, v1")
    L("v_lshl_add_u32 v4, v5, 4, v4")
    L("v_lshl_add_u32 v4, v2, 9, v4")
    for i in range(5):
        L(f"buffer_store_dwordx4 v[{160+4*i}:{163+4*i}], v4, s[20:23], 0 offen")
        L("v_add_u32 v4, 8192, v4")
    e(f"{name}_end:")
    L("s_endpgm")
    kdesc(name, 184)
    return (512, 64, 0)

def gen_gemm(name, kind, res_off=None, out_ws=True, out_off=None):
    gu = kind == "gu"
    KS = 40 if gu else 108
    TN = 4 if gu else 2
    NCT = 27 if gu else 10
    NWG = 16 * NCT
    STG = (4 + TN) * 4096
    NS = KS // 4
    WN = TN // 2
    NDMA = 4 + TN
    NB = 4 if gu else 6
    kbegin(name)
    L(f"s_cmp_ge_u32 s2, {NWG}")
    L(f"s_cbranch_scc1 {name}_end")
    L("s_load_dwordx2 s[4:5], s[0:1], 96")
    L("s_load_dwordx2 s[6:7], s[0:1], 80")
    L("s_lshr_b32 s3, s2, 3")
    L(f"s_mul_hi_u32 s24, s3, {(2**32+NCT-1)//NCT}")
    L(f"s_mul_i32 s25, s24, {NCT}")
    L("s_sub_u32 s25, s3, s25")
    L("s_and_b32 s3, s2, 7")
    L("s_lshl_b32 s3, s3, 1")
    L("s_add_u32 s24, s24, s3")
    L("v_lshrrev_b32 v4, 6, v0")
    L("v_and_b32 v5, 63, v0")
    L("v_lshlrev_b32 v5, 4, v5")
    L("v_readfirstlane_b32 s26, v4")
    L("s_waitcnt lgkmcnt(0)")
    if gu:
        srd(8, 4, 5, XN_OFF, XB); srd(12, 4, 5, WGU_OFF, WGU_SZ); srd(16, 4, 5, H_OFF, H_SZ)
    else:
        srd(8, 4, 5, H_OFF, H_SZ); srd(12, 4, 5, WD_OFF, WD_SZ)
        if out_ws: srd(16, 4, 5, out_off, XB)
        else: srd(16, 6, 7, 0, XB)
        srd(20, 4, 5, res_off, XB)
    L("s_lshl_b32 s27, s24, 2"); L("s_add_u32 s27, s27, s26"); L(f"s_mul_i32 s27, s27, {KS*1024}")
    L("v_add_u32 v1, s27, v5")
    L("s_lshl_b32 s28, s26, 12")
    if gu:
        L("s_lshl_b32 s27, s25, 2"); L("s_add_u32 s27, s27, s26"); L(f"s_mul_i32 s27, s27, {KS*1024}")
        L("s_add_u32 s29, s28, 16384")
    else:
        L("s_and_b32 s30, s26, 1"); L("s_lshr_b32 s31, s26, 1")
        L("s_lshl_b32 s27, s25, 1"); L("s_add_u32 s27, s27, s30"); L(f"s_mul_i32 s27, s27, {KS*1024}")
        L("s_lshl_b32 s31, s31, 11"); L("s_add_u32 s27, s27, s31")
        L("s_lshl_b32 s29, s30, 12"); L("s_add_u32 s29, s29, s31"); L("s_add_u32 s29, s29, 16384")
    L("v_add_u32 v2, s27, v5")
    L("s_lshr_b32 s30, s26, 1"); L("s_and_b32 s31, s26, 1")
    L("s_lshl_b32 s32, s30, 13")
    L("v_add_u32 v6, s32, v5")
    L(f"s_mul_i32 s32, s31, {WN*4096}"); L("s_add_u32 s32, s32, 16384")
    L("v_add_u32 v7, s32, v5")
    ACC = 64
    for i in range(32 * WN): L(f"v_mov_b32 v{ACC+i}, 0")
    L("s_mov_b32 s33, 0")
    L("s_mov_b32 s34, 0")
    def issue():
        L("s_add_u32 m0, s34, s28")
        L("s_nop 0")
        for kk in range(4):
            L(f"buffer_load_dwordx4 v1, s[8:11], s33 offen offset:{kk*1024} lds")
        L("s_add_u32 m0, s34, s29")
        L("s_nop 0")
        for kk in range(TN):
            L(f"buffer_load_dwordx4 v2, s[12:15], s33 offen offset:{kk*1024} lds")
        L("s_add_u32 s33, s33, 4096")
        L(f"s_add_u32 s34, s34, {STG}")
        L(f"s_cmp_eq_u32 s34, {NB*STG}")
        L("s_cselect_b32 s34, 0, s34")
    for _ in range(NB-1): issue()
    L("s_mov_b32 s35, 0")
    L("s_mov_b32 s36, 0")
    e(f"{name}_loop:")
    L(f"s_waitcnt vmcnt({NDMA*(NB-2)})")
    L("s_barrier")
    issue()
    L("v_add_u32 v8, s35, v6")
    L("v_add_u32 v9, s35, v7")
    NF = 2 + WN
    def rd(kk):
        b = 10 + (kk % 2) * NF * 4
        for r in range(2):
            L(f"ds_read_b128 v[{b+4*r}:{b+4*r+3}], v8 offset:{r*4096+kk*1024}")
        for n in range(WN):
            L(f"ds_read_b128 v[{b+8+4*n}:{b+8+4*n+3}], v9 offset:{n*4096+kk*1024}")
    rd(0)
    for kk in range(4):
        if kk < 3:
            rd(kk+1); L(f"s_waitcnt lgkmcnt({NF})")
        else:
            L("s_waitcnt lgkmcnt(0)")
        b = 10 + (kk % 2) * NF * 4
        for r in range(2):
            for n in range(WN):
                a = ACC + 16 * (r * WN + n)
                L(f"v_mfma_f32_32x32x16_bf16 v[{a}:{a+15}], v[{b+8+4*n}:{b+8+4*n+3}], v[{b+4*r}:{b+4*r+3}], v[{a}:{a+15}]")
    L(f"s_add_u32 s35, s35, {STG}")
    L(f"s_cmp_eq_u32 s35, {NB*STG}")
    L("s_cselect_b32 s35, 0, s35")
    L("s_add_u32 s36, s36, 1")
    L(f"s_cmp_lt_u32 s36, {NS}")
    L(f"s_cbranch_scc1 {name}_loop")
    L("s_nop 15")
    L("v_and_b32 v10, 31, v0")
    L("v_bfe_u32 v11, v0, 5, 1")
    if gu:
        for r in range(2):
            L("s_lshl_b32 s40, s24, 2"); L("s_lshl_b32 s41, s30, 1"); L("s_add_u32 s40, s40, s41")
            L(f"s_add_u32 s40, s40, {r}"); L("s_mul_i32 s40, s40, 108")
            L("s_lshl_b32 s41, s25, 2"); L("s_add_u32 s40, s40, s41"); L("s_lshl_b32 s41, s31, 1"); L("s_add_u32 s40, s40, s41")
            L("s_lshl_b32 s40, s40, 10")
            L("v_lshlrev_b32 v12, 4, v10")
            L("v_lshl_add_u32 v12, v11, 3, v12")
            g0 = ACC + 32 * r; u0 = g0 + 16
            for i in range(16):
                rbf(g0+i, g0+i); rbf(u0+i, u0+i)
                L(f"v_mul_f32 v{g0+i}, 0xbfb8aa3b, v{g0+i}")
                L(f"v_exp_f32 v{g0+i}, v{g0+i}")
                L("s_nop 0")
                L(f"v_add_f32 v{g0+i}, 1.0, v{g0+i}")
                L(f"v_rcp_f32 v{g0+i}, v{g0+i}")
                L("s_nop 0")
                rbf(g0+i, g0+i)
                L(f"v_mul_f32 v{g0+i}, v{g0+i}, v{u0+i}")
            for g4 in range(4):
                L(f"v_cvt_pk_bf16_f32 v14, v{g0+4*g4}, v{g0+4*g4+1}")
                L(f"v_cvt_pk_bf16_f32 v15, v{g0+4*g4+2}, v{g0+4*g4+3}")
                L(f"buffer_store_dwordx2 v[14:15], v12, s[16:19], s40 offen offset:{(g4//2)*1024+(g4%2)*512}")
                L("s_nop 1")
    else:
        for r in range(2):
            L("s_lshl_b32 s40, s24, 7"); L("s_lshl_b32 s41, s30, 6"); L("s_add_u32 s40, s40, s41")
            L(f"s_add_u32 s40, s40, {32*r}")
            L("v_add_u32 v12, s40, v10")
            L("v_mul_u32_u24 v12, 1280, v12")
            L("s_lshl_b32 s40, s25, 7"); L("s_lshl_b32 s41, s31, 6"); L("s_add_u32 s40, s40, s41")
            L("v_lshl_add_u32 v13, v11, 3, s40")
            L("v_add_u32 v12, v12, v13")
            a0 = ACC + 16 * r
            for g4 in range(4):
                L(f"buffer_load_dwordx2 v[{16+2*g4}:{17+2*g4}], v12, s[20:23], 0 offen offset:{16*g4}")
            for g4 in range(4):
                L(f"s_waitcnt vmcnt({3-g4})" if r == 0 else f"s_waitcnt vmcnt({min(3-g4, 3)})")
                for i in range(4):
                    rbf(a0+4*g4+i, a0+4*g4+i)
                    if i % 2 == 0: L(f"v_lshlrev_b32 v14, 16, v{16+2*g4+i//2}")
                    else: L(f"v_and_b32 v14, 0xffff0000, v{16+2*g4+i//2}")
                    L(f"v_add_f32 v{a0+4*g4+i}, v{a0+4*g4+i}, v14")
                L(f"v_cvt_pk_bf16_f32 v{24+2*g4}, v{a0+4*g4}, v{a0+4*g4+1}")
                L(f"v_cvt_pk_bf16_f32 v{25+2*g4}, v{a0+4*g4+2}, v{a0+4*g4+3}")
            for g4 in range(4):
                L(f"buffer_store_dwordx2 v[{24+2*g4}:{25+2*g4}], v12, s[16:19], 0 offen offset:{16*g4}")
            L("s_waitcnt vmcnt(0)")
    e(f"{name}_end:")
    L("s_endpgm")
    kdesc(name, ACC + 32 * WN)
    return (NWG, 256, NB * STG)

def gen_gemm2(name, kind, res_off=None, out_ws=True, out_off=None):
    gu = kind == "gu"
    KS = 40 if gu else 108
    RN = 4 if gu else 2
    RM = 2
    NCT = 27 if gu else 10
    NWG = 32 * NCT
    DEP = 4 if gu else 6
    NL = RM + RN
    kbegin(name)
    L(f"s_cmp_ge_u32 s2, {NWG}")
    L(f"s_cbranch_scc1 {name}_end")
    stamp(0)
    L("s_load_dwordx2 s[4:5], s[0:1], 96")
    L("s_load_dwordx2 s[6:7], s[0:1], 80")
    L("s_lshr_b32 s3, s2, 3")
    L(f"s_mul_hi_u32 s24, s3, {(2**32+NCT-1)//NCT}")
    L(f"s_mul_i32 s25, s24, {NCT}")
    L("s_sub_u32 s25, s3, s25")
    L("s_and_b32 s3, s2, 7")
    L("s_lshl_b32 s3, s3, 2")
    L("s_add_u32 s24, s24, s3")
    L("v_lshlrev_b32 v9, 4, v0")
    L("s_waitcnt lgkmcnt(0)")
    if gu:
        srd(8, 4, 5, XN_OFF, XN_SZ); srd(12, 4, 5, WGU_OFF, WGU_SZ); srd(16, 4, 5, H_OFF, H_SZ)
    else:
        srd(8, 4, 5, H_OFF, H_SZ); srd(12, 4, 5, WD_OFF, WD_SZ)
        if out_ws: srd(16, 4, 5, out_off, XB)
        else: srd(16, 6, 7, 0, XB)
        srd(20, 4, 5, res_off, XB)
    for r in range(RM):
        L("s_lshl_b32 s27, s24, 1"); L(f"s_add_u32 s27, s27, {r}"); L(f"s_mul_i32 s27, s27, {S40 if gu else S108}")
        L(f"v_add_u32 v{1+r}, s27, v9")
    for n in range(RN):
        L(f"s_mul_i32 s27, s25, {RN}"); L(f"s_add_u32 s27, s27, {n}"); L(f"s_mul_i32 s27, s27, {S40 if gu else S108}")
        L(f"v_add_u32 v{3+n}, s27, v9")
    FB = 16
    ACC = FB + DEP * NL * 4
    for i in range(16 * RM * RN): L(f"v_mov_b32 v{ACC+i}, 0")
    L("s_mov_b32 s33, 0")
    def issue(j):
        b = FB + j * NL * 4
        for r in range(RM):
            L(f"buffer_load_dwordx4 v[{b+4*r}:{b+4*r+3}], v{1+r}, s[8:11], s33 offen")
        for n in range(RN):
            L(f"buffer_load_dwordx4 v[{b+4*RM+4*n}:{b+4*RM+4*n+3}], v{3+n}, s[12:15], s33 offen")
        L("s_add_u32 s33, s33, 1024")
    for j in range(DEP): issue(j)
    stamp(1)
    L("s_mov_b32 s36, 0")
    e(f"{name}_loop:")
    for j in range(DEP):
        L(f"s_waitcnt vmcnt({(DEP-1)*NL})")
        b = FB + j * NL * 4
        for r in range(RM):
            for n in range(RN):
                a = ACC + 16 * (r * RN + n)
                L(f"v_mfma_f32_32x32x16_bf16 v[{a}:{a+15}], v[{b+4*RM+4*n}:{b+4*RM+4*n+3}], v[{b+4*r}:{b+4*r+3}], v[{a}:{a+15}]")
        issue(j)
    L("s_add_u32 s36, s36, 1")
    L(f"s_cmp_lt_u32 s36, {KS//DEP}")
    L(f"s_cbranch_scc1 {name}_loop")
    L("s_nop 15")
    stamp(2)
    L("v_and_b32 v10, 31, v0")
    L("v_bfe_u32 v11, v0, 5, 1")
    if gu:
        for r in range(2):
          for p in range(2):
            L("s_lshl_b32 s40, s24, 1"); L(f"s_add_u32 s40, s40, {r}"); L(f"s_mul_i32 s40, s40, {S108}")
            L("s_lshl_b32 s41, s25, 12"); L("s_add_u32 s40, s40, s41"); L(f"s_add_u32 s40, s40, {2048*p}")
            L("v_lshlrev_b32 v12, 4, v10")
            L("v_lshl_add_u32 v12, v11, 3, v12")
            g0 = ACC + 16 * (r * 4 + 2 * p); u0 = g0 + 16
            for i in range(16):
                rbf(g0+i, g0+i); rbf(u0+i, u0+i)
                L(f"v_mul_f32 v{g0+i}, 0xbfb8aa3b, v{g0+i}")
                L(f"v_exp_f32 v{g0+i}, v{g0+i}")
                L("s_nop 0")
                L(f"v_add_f32 v{g0+i}, 1.0, v{g0+i}")
                L(f"v_rcp_f32 v{g0+i}, v{g0+i}")
                L("s_nop 0")
                rbf(g0+i, g0+i)
                L(f"v_mul_f32 v{g0+i}, v{g0+i}, v{u0+i}")
            for g4 in range(4):
                L(f"v_cvt_pk_bf16_f32 v14, v{g0+4*g4}, v{g0+4*g4+1}")
                L(f"v_cvt_pk_bf16_f32 v15, v{g0+4*g4+2}, v{g0+4*g4+3}")
                L(f"buffer_store_dwordx2 v[14:15], v12, s[16:19], s40 offen offset:{(g4//2)*1024+(g4%2)*512}")
                L("s_nop 1")
    else:
        L("s_waitcnt vmcnt(0)")
        for r in range(2):
          for n in range(2):
            L("s_lshl_b32 s40, s24, 6"); L(f"s_add_u32 s40, s40, {32*r}")
            L("v_add_u32 v12, s40, v10")
            L("v_mul_u32_u24 v12, 1280, v12")
            L("s_lshl_b32 s40, s25, 7"); L(f"s_add_u32 s40, s40, {64*n}")
            L("v_lshl_add_u32 v13, v11, 3, s40")
            L("v_add_u32 v12, v12, v13")
            a0 = ACC + 16 * (r * 2 + n)
            for g4 in range(4):
                L(f"buffer_load_dwordx2 v[{16+2*g4}:{17+2*g4}], v12, s[20:23], 0 offen offset:{16*g4}")
            for g4 in range(4):
                L(f"s_waitcnt vmcnt({3-g4})")
                for i in range(4):
                    rbf(a0+4*g4+i, a0+4*g4+i)
                    if i % 2 == 0: L(f"v_lshlrev_b32 v14, 16, v{16+2*g4+i//2}")
                    else: L(f"v_and_b32 v14, 0xffff0000, v{16+2*g4+i//2}")
                    L(f"v_add_f32 v{a0+4*g4+i}, v{a0+4*g4+i}, v14")
                L(f"v_cvt_pk_bf16_f32 v{24+2*g4}, v{a0+4*g4}, v{a0+4*g4+1}")
                L(f"v_cvt_pk_bf16_f32 v{25+2*g4}, v{a0+4*g4+2}, v{a0+4*g4+3}")
            for g4 in range(4):
                L(f"buffer_store_dwordx2 v[{24+2*g4}:{25+2*g4}], v12, s[16:19], 0 offen offset:{16*g4}")
            L("s_waitcnt vmcnt(0)")
    stamp(3)
    stamp_out(4)
    e(f"{name}_end:")
    L("s_endpgm")
    kdesc(name, 256 if STAMP else ACC + 16 * RM * RN)
    return (NWG, 64, 0)

launches = []
def add(n, cfg): launches.append((n, cfg))
add("ka_kernel", gen_pre("ka_kernel"))
add("k0_kernel", gen_conv("k0_kernel"))
add("k1_kernel", gen_ln("k1_kernel", 0, 0, X1_OFF))
add("k2_kernel", gen_gemm2("k2_kernel", "gu"))
add("k3_kernel", gen_gemm2("k3_kernel", "dn", res_off=X1_OFF, out_ws=True, out_off=X2_OFF))
add("k4_kernel", gen_ln("k4_kernel", 96, X2_OFF, X3_OFF))
add("k5_kernel", gen_gemm2("k5_kernel", "gu"))
add("k6_kernel", gen_gemm2("k6_kernel", "dn", res_off=X3_OFF, out_ws=False))
hdr = [f"; @launch kernel={n} grid=({g},1,1) block=({b},1,1) lds={l}" for n, (g, b, l) in launches]
txt = "\n".join(hdr) + '\n.amdgcn_target "amdgcn-amd-amdhsa--gfx950"\n.text\n' + "\n".join(out) + '\n.section .rodata,"a"\n' + "\n".join(".p2align 6\n" + d for d in descs) + "\n"
open(f"cdna_kernels/{NAME}.s", "w").write(txt)
```

```python
NAME = "interleave_layers__ssm_conv_h3__glu_gated_glu__prompt"
S, D, F = 2048, 640, 1728
XB = S * D * 2
S40 = 40*1024+1280; S108 = 108*1024+1280
WGU_OFF = 0;            WGU_SZ = 108 * S40
WD_OFF = 0x480000;      WD_SZ = 20 * S108
Y_OFF = 0x700000
X1_OFF = 0xA00000
X2_OFF = 0xD00000
X3_OFF = 0x1000000
XN_OFF = 0x1300000
H_OFF = 0x1600000;      H_SZ = 64 * S108
XN_SZ = 64 * S40
out = []
def e(s): out.append(s)
def L(s): out.append("    " + s)

def srd(d, lo, hi, off, size):
    L(f"s_add_u32 s{d}, s{lo}, {off & 0xffffffff}")
    L(f"s_addc_u32 s{d+1}, s{hi}, 0")
    L(f"s_and_b32 s{d+1}, s{d+1}, 0xffff")
    L(f"s_mov_b32 s{d+2}, {size}")
    L(f"s_mov_b32 s{d+3}, 0x00020000")

def kbegin(name):
    e(f".globl {name}\n.p2align 8\n.type {name},@function\n{name}:")
descs = []
def kdesc(name, vgpr, sgpr=102):
    a = (vgpr + 3) // 4 * 4
    descs.append(f""".amdhsa_kernel {name}
  .amdhsa_next_free_vgpr {vgpr}
  .amdhsa_next_free_sgpr {sgpr}
  .amdhsa_accum_offset {a}
  .amdhsa_group_segment_fixed_size 0
  .amdhsa_kernarg_size 104
  .amdhsa_user_sgpr_count 2
  .amdhsa_user_sgpr_kernarg_segment_ptr 1
  .amdhsa_system_sgpr_workgroup_id_x 1
.end_amdhsa_kernel""")

import os
STAMP = bool(os.environ.get("STAMP"))
def stamp(i):
    if not STAMP: return
    L("s_waitcnt vmcnt(0) lgkmcnt(0)")
    L(f"s_memtime s[{60+2*i}:{61+2*i}]")
    L("s_waitcnt lgkmcnt(0)")
def stamp_out(n):
    if not STAMP: return
    L("s_load_dwordx2 s[80:81], s[0:1], 88")
    L("s_waitcnt lgkmcnt(0)")
    srd(84, 80, 81, 0, 256)
    L("v_mov_b32 v250, 0")
    for i in range(n):
        L(f"s_sub_u32 s90, s{60+2*i}, s60")
        L("v_mov_b32 v251, s90")
        L("s_cmp_eq_u32 s2, 0")
        L(f"s_cbranch_scc0 .Lst{len(out)}")
        L(f"buffer_store_dword v251, v250, s[84:87], 0 offen offset:{4*i}")
        e(f".Lst{len(out)-2}:")
def rbf(dst, src):
    L(f"v_cvt_pk_bf16_f32 v{dst}, v{src}, v{src}")
    L(f"v_lshlrev_b32 v{dst}, 16, v{dst}")

KVB_OFF = 0x1E00000; KP_OFF = 0x2100000; KPR = 9280
def gen_pre(name):
    NKV, NKP, NPACK = 320, 160, 405
    NCONV = NKV + NKP
    kbegin(name)
    X = os.environ.get("KAX", "")
    L(f"s_cmp_ge_u32 s2, {NCONV+NPACK}")
    L(f"s_cbranch_scc1 {name}_end")
    L(f"s_cmp_ge_u32 s2, {NCONV}")
    L(f"s_cbranch_scc1 {name}_" + ("end" if "p" in X else "pack"))
    L(f"s_cmp_ge_u32 s2, {NKV}")
    L(f"s_cbranch_scc1 {name}_" + ("end" if "k" in X else "kp"))
    if "v" in X: L(f"s_branch {name}_end")
    L("s_load_dwordx4 s[4:7], s[0:1], 8")
    L("s_load_dwordx2 s[28:29], s[0:1], 24")
    L("s_load_dwordx2 s[34:35], s[0:1], 96")
    L(f"s_mul_hi_u32 s40, s2, {(2**32+9)//10}")
    L("s_mul_i32 s41, s40, 10"); L("s_sub_u32 s41, s2, s41")
    L("v_lshrrev_b32 v1, 3, v0"); L("v_and_b32 v2, 7, v0")
    L("v_lshl_add_u32 v1, s40, 6, v1")
    L("v_lshl_add_u32 v2, s41, 3, v2")
    L("v_mul_u32_u24 v3, 1280, v1")
    L("v_lshl_add_u32 v3, v2, 4, v3")
    L("v_lshlrev_b32 v4, 6, v2")
    L("s_waitcnt lgkmcnt(0)")
    srd(8, 4, 5, 0, XB); srd(12, 6, 7, 0, XB); srd(16, 28, 29, 0, D*8); srd(20, 34, 35, KVB_OFF, XB)
    for i in range(4): L(f"buffer_load_dwordx4 v[{8+4*i}:{11+4*i}], v4, s[16:19], 0 offen offset:{16*i}")
    for p in range(2):
        L("v_subrev_u32 v5, 3840, v3")
        for i in range(4):
            L(f"buffer_load_dwordx4 v[{24+20*p+4*i}:{27+20*p+4*i}], v5, s[8:11], 0 offen")
            L("v_add_u32 v5, 1280, v5")
        L(f"buffer_load_dwordx4 v[{40+20*p}:{43+20*p}], v3, s[12:15], 0 offen")
        L(f"v_add_u32 v3, {32*1280}, v3")
    L("v_lshlrev_b32 v6, 15, v2")
    L("v_lshl_add_u32 v6, v1, 3, v6")
    L("s_waitcnt vmcnt(0)")
    for p in range(2):
        for c in range(8):
            def ext(dst, reg, hi):
                L(f"v_and_b32 v{dst}, 0xffff0000, v{reg}" if hi else f"v_lshlrev_b32 v{dst}, 16, v{reg}")
            for tt in range(4):
                tap = 3 - tt
                ext(70, 8+2*c+tap//2, tap % 2)
                ext(71, 24+20*p+4*tt+c//2, c % 2)
                if tt == 0:
                    L("v_mul_f32 v72, v70, v71"); rbf(72, 72)
                else:
                    L("v_mul_f32 v73, v70, v71"); rbf(73, 73)
                    L("v_add_f32 v72, v72, v73"); rbf(72, 72)
            ext(71, 40+20*p+c//2, c % 2)
            L(f"v_mul_f32 v{64+c%2}, v72, v71")
            if c % 2: L(f"v_cvt_pk_bf16_f32 v{66+c//2}, v64, v65")
        L(f"buffer_store_dwordx2 v[66:67], v6, s[20:23], 0 offen offset:{256*p}")
        L("v_add_u32 v7, 16384, v6")
        L(f"buffer_store_dwordx2 v[68:69], v7, s[20:23], 0 offen offset:{256*p}")
        L("s_nop 1")
    L("s_endpgm")
    e(f"{name}_kp:")
    L("s_load_dwordx2 s[4:5], s[0:1], 32")
    L("s_load_dwordx2 s[34:35], s[0:1], 96")
    L(f"s_sub_u32 s40, s2, {NKV}")
    L("v_lshrrev_b32 v1, 6, v0"); L("v_and_b32 v2, 63, v0")
    L("v_lshl_add_u32 v1, s40, 2, v1")
    L("v_lshlrev_b32 v3, 12, v1"); L("v_lshl_add_u32 v3, v2, 4, v3")
    L(f"v_mul_u32_u24 v4, {KPR}, v1"); L("v_lshl_add_u32 v4, v2, 4, v4")
    L("s_waitcnt lgkmcnt(0)")
    srd(8, 4, 5, 0, D*S*2); srd(12, 34, 35, KP_OFF, D*KPR)
    for i in range(4): L(f"buffer_load_dwordx4 v[{8+4*i}:{11+4*i}], v3, s[8:11], 0 offen offset:{1024*i}")
    for i in range(4): L(f"v_mov_b32 v{24+i}, 0")
    L("v_cmp_gt_u32 vcc, 33, v2")
    L("s_and_saveexec_b64 s[20:21], vcc")
    L("v_add_u32 v5, 4096, v4")
    L("buffer_store_dwordx4 v[24:27], v5, s[12:15], 0 offen offset:16")
    L("v_add_u32 v5, 4640, v5")
    L("buffer_store_dwordx4 v[24:27], v5, s[12:15], 0 offen offset:16")
    L("v_cmp_gt_u32 vcc, 2, v2")
    L("s_and_b64 exec, exec, vcc")
    L("buffer_store_dwordx4 v[24:27], v4, s[12:15], 0 offen")
    L("v_add_u32 v5, 4640, v4")
    L("buffer_store_dwordx4 v[24:27], v5, s[12:15], 0 offen")
    L("s_mov_b64 exec, s[20:21]")
    L("s_waitcnt vmcnt(0)")
    L("v_add_u32 v5, 4640, v4")
    for i in range(4): L(f"buffer_store_dwordx4 v[{8+4*i}:{11+4*i}], v4, s[12:15], 0 offen offset:{32+1024*i}")
    for i in range(4): L(f"buffer_store_dwordx4 v[{8+4*i}:{11+4*i}], v5, s[12:15], 0 offen offset:{30+1024*i}")
    L("s_endpgm")
    e(f"{name}_pack:")
    L("s_load_dwordx4 s[4:7], s[0:1], 56")
    L("s_load_dwordx2 s[28:29], s[0:1], 72")
    L("s_load_dwordx2 s[34:35], s[0:1], 96")
    L("v_lshrrev_b32 v4, 6, v0")
    L("s_nop 1")
    L("v_readfirstlane_b32 s3, v4")
    L(f"s_sub_u32 s40, s2, {NCONV}")
    L("s_lshl_b32 s40, s40, 2")
    L("s_add_u32 s40, s40, s3")
    L("s_lshl_b32 s40, s40, 2")
    L("v_and_b32 v5, 31, v0")
    L("v_bfe_u32 v6, v0, 5, 1")
    L("s_waitcnt lgkmcnt(0)")
    srd(16, 34, 35, 0, WD_OFF + WD_SZ)
    L("s_lshl_b32 s47, s40, 10")
    L("s_cmp_ge_u32 s40, 4320")
    L(f"s_cbranch_scc1 {name}_pd")
    L(f"s_mul_hi_u32 s41, s40, {(2**32+39)//40}")
    L("s_mul_i32 s42, s41, 40")
    L("s_sub_u32 s42, s40, s42")
    L(f"s_mul_i32 s47, s41, {S40}"); L("s_lshl_b32 s49, s42, 10"); L("s_add_u32 s47, s47, s49")
    L("s_and_b32 s43, s41, 1")
    L("s_cmp_eq_u32 s43, 0")
    L("s_cselect_b32 s44, s4, s6")
    L("s_cselect_b32 s45, s5, s7")
    srd(8, 44, 45, 0, D*F*2)
    L("s_lshr_b32 s43, s41, 1")
    L("s_lshl_b32 s43, s43, 5")
    L("s_movk_i32 s46, 3456")
    L(f"s_branch {name}_pgo")
    e(f"{name}_pd:")
    L("s_sub_u32 s40, s40, 4320")
    L(f"s_mul_hi_u32 s41, s40, {(2**32+107)//108}")
    L("s_mul_i32 s42, s41, 108")
    L("s_sub_u32 s42, s40, s42")
    srd(8, 28, 29, 0, D*F*2)
    L("s_lshl_b32 s43, s41, 5")
    L("s_movk_i32 s46, 1280")
    L(f"s_mul_i32 s47, s41, {S108}"); L("s_lshl_b32 s49, s42, 10"); L("s_add_u32 s47, s47, s49")
    L(f"s_add_u32 s47, s47, {WD_OFF}")
    e(f"{name}_pgo:")
    L("s_lshl_b32 s42, s42, 4")
    L("v_lshl_add_u32 v6, v6, 3, s42")
    L("v_mul_lo_u32 v6, v6, s46")
    L("v_add_u32 v5, s43, v5")
    L("v_lshl_add_u32 v6, v5, 1, v6")
    L("s_lshl_b32 s48, s46, 3")
    for j in range(4):
      for i in range(4):
        L(f"buffer_load_ushort v{10+4*j+i}, v6, s[8:11], 0 offen")
        L("v_add_u32 v6, s46, v6")
        L(f"buffer_load_ushort v{30+4*j+i}, v6, s[8:11], 0 offen")
        L("v_add_u32 v6, s46, v6")
      L("v_add_u32 v6, s48, v6")
    L("v_and_b32 v7, 63, v0")
    L("v_lshlrev_b32 v7, 4, v7")
    L("s_waitcnt vmcnt(0)")
    for i in range(16): L(f"v_lshl_or_b32 v{10+i}, v{30+i}, 16, v{10+i}")
    for j in range(4): L(f"buffer_store_dwordx4 v[{10+4*j}:{13+4*j}], v7, s[16:19], s47 offen offset:{1024*j}")
    e(f"{name}_end:")
    L("s_endpgm")
    kdesc(name, 80)
    return (NCONV + NPACK, 256, 0)

def gen_conv(name):
    XR = 5120; YS = 4 * XR
    kbegin(name)
    L("s_cmp_ge_u32 s2, 160")
    L(f"s_cbranch_scc1 {name}_end")
    stamp(0)
    L("s_load_dwordx2 s[32:33], s[0:1], 40")
    L("s_load_dwordx2 s[34:35], s[0:1], 96")
    L("v_lshlrev_b32 v1, 4, v0")
    for i in range(4): L(f"v_mov_b32 v{4+i}, 0")
    for i in range(5): L(f"ds_write_b128 v1, v[4:7] offset:{i*4096}")
    L("s_waitcnt lgkmcnt(0)")
    srd(8, 34, 35, KVB_OFF, XB); srd(20, 34, 35, KP_OFF, D*KPR); srd(24, 32, 33, 0, D*2); srd(36, 34, 35, Y_OFF, XB)
    L("s_lshl_b32 s3, s2, 14")
    L("v_add_u32 v2, s3, v1")
    for i in range(4): L(f"buffer_load_dwordx4 v[{8+4*i}:{11+4*i}], v2, s[8:11], 0 offen offset:{0}" if False else f"buffer_load_dwordx4 v[{8+4*i}:{11+4*i}], v2, s[8:11], s{44+i} offen") if False else None
    for i in range(4):
        L(f"buffer_load_dwordx4 v[{8+4*i}:{11+4*i}], v2, s[8:11], 0 offen")
        L("v_add_u32 v2, 4096, v2")
    L("v_lshrrev_b32 v4, 6, v0"); L("v_and_b32 v5, 63, v0")
    L(f"v_mul_u32_u24 v7, {XR}, v4")
    L("v_lshlrev_b32 v9, 2, v0")
    L(f"v_sub_u32 v3, {2064*2 - 2 - 3*1024}, v9")
    L("s_barrier")
    L("s_waitcnt vmcnt(0)")
    for i in range(4):
        for h in range(2):
            for c in range(4):
                reg = 8 + 4*i + 2*h + c//2
                if c % 2: L(f"ds_write_b16_d16_hi v3, v{reg} offset:{c*XR + (3-i)*1024 + (1-h)*2}")
                else: L(f"ds_write_b16 v3, v{reg} offset:{c*XR + (3-i)*1024 + (1-h)*2}")
    L("s_waitcnt lgkmcnt(0)")
    L("s_barrier")
    stamp(1)
    L("v_and_b32 v10, 15, v5")
    L("v_lshrrev_b32 v11, 4, v5")
    L("v_lshl_add_u32 v6, s2, 2, v4")
    L(f"v_mul_u32_u24 v12, {KPR}, v6")
    L("v_and_b32 v14, 1, v10")
    L("v_mul_u32_u24 v14, 4638, v14")
    L("v_add_u32 v12, v12, v14")
    L("v_lshl_add_u32 v12, v10, 1, v12")
    L("v_lshl_add_u32 v12, v11, 4, v12")
    L("v_lshlrev_b32 v13, 5, v10")
    L("v_lshlrev_b32 v14, 4, v11")
    L("v_sub_u32 v13, v14, v13")
    L("v_add_u32 v13, v7, v13")
    for i in range(32): L(f"v_mov_b32 v{16+i}, 0")
    L("s_mov_b32 s41, 0")
    def ald(b):
        for m in range(8): L(f"buffer_load_dwordx4 v[{b+4*m}:{b+3+4*m}], v12, s[20:23], 0 offen offset:{512*m}")
        L("v_add_u32 v15, 4096, v12")
        L(f"buffer_load_dwordx4 v[{b+32}:{b+35}], v15, s[20:23], 0 offen")
        L("v_add_u32 v12, 64, v12")
    ald(84)
    e(f"{name}_rl:")
    for half in range(2):
        cur = 84 + 36*half; nxt = 84 + 36*(1-half)
        for v in range(-7, 2):
            L(f"ds_read_b128 v[{48+4*(v+7)}:{51+4*(v+7)}], v13 offset:{4096 + 512*v}")
        ald(nxt)
        L("s_waitcnt lgkmcnt(0)")
        for m in range(9):
            L(f"s_waitcnt vmcnt({9+8-m})")
            for q in range(max(0, m-1), 8):
                v = m - q
                L(f"v_mfma_f32_16x16x32_bf16 v[{16+4*q}:{19+4*q}], v[{cur+4*m}:{cur+3+4*m}], v[{48+4*(v+7)}:{51+4*(v+7)}], v[{16+4*q}:{19+4*q}]")
        L("v_add_u32 v13, 64, v13")
    L("s_add_u32 s41, s41, 1")
    L("s_cmp_lt_u32 s41, 4")
    L(f"s_cbranch_scc1 {name}_rl")
    stamp(2)
    L("s_waitcnt vmcnt(0)")
    L("v_lshlrev_b32 v6, 1, v6")
    L("buffer_load_ushort v15, v6, s[24:27], 0 offen")
    L("v_lshlrev_b32 v10, 4, v10")
    L("v_lshl_add_u32 v10, v11, 2, v10")
    L("v_lshlrev_b32 v11, 1, v10")
    L(f"v_sub_u32 v11, {2060*2 - 7*512}, v11")
    L("v_add_u32 v11, v7, v11")
    L("v_lshlrev_b32 v12, 3, v10")
    L("v_lshl_add_u32 v12, v4, 1, v12")
    for q in range(8):
        L(f"ds_read_b64 v[{84+2*q}:{85+2*q}], v11 offset:{(7-q)*512}")
        L(f"ds_read_u16 v{100+q}, v11 offset:{(7-q)*512+8}")
    L("s_waitcnt vmcnt(0) lgkmcnt(0)")
    L("v_lshlrev_b32 v15, 16, v15")
    for q in range(8):
        L(f"v_lshlrev_b32 v50, 16, v{100+q}"); L(f"v_and_b32 v51, 0xffff0000, v{85+2*q}")
        L(f"v_lshlrev_b32 v52, 16, v{85+2*q}"); L(f"v_and_b32 v53, 0xffff0000, v{84+2*q}")
        for i in range(4):
            L(f"v_mul_f32 v{50+i}, v{50+i}, v15"); rbf(50+i, 50+i)
            rbf(16+4*q+i, 16+4*q+i)
            L(f"v_add_f32 v{50+i}, v{50+i}, v{16+4*q+i}")
            L(f"v_cvt_pk_bf16_f32 v{50+i}, v{50+i}, v{50+i}")
            L(f"ds_write_b16 v12, v{50+i} offset:{YS + q*2048 + i*8}")
    L("s_waitcnt lgkmcnt(0)")
    L("s_barrier")
    stamp(3)
    L("v_add_u32 v2, s3, v1")
    for i in range(4): L(f"ds_read_b128 v[{16+4*i}:{19+4*i}], v1 offset:{YS + i*4096}")
    L("s_waitcnt lgkmcnt(0)")
    for i in range(4):
        L(f"buffer_store_dwordx4 v[{16+4*i}:{19+4*i}], v2, s[36:39], 0 offen")
        L("v_add_u32 v2, 4096, v2")
    stamp(4)
    stamp_out(5)
    e(f"{name}_end:")
    L("s_endpgm")
    kdesc(name, 256 if STAMP else 160)
    return (160, 256, YS + 16384)

def dpp_sum(v):
    for r in (8, 4, 2, 1):
        L("s_nop 1")
        L(f"v_add_f32_dpp v{v}, v{v}, v{v} row_ror:{r} row_mask:0xf bank_mask:0xf")

def ln_core(x0):
    L(f"v_mov_b32 v90, v{x0}")
    for i in range(1, 40): L(f"v_add_f32 v90, v90, v{x0+i}")
    dpp_sum(90)
    L(f"v_mul_f32 v90, {1.0/640!r}, v90")
    L("v_mov_b32 v91, 0")
    for i in range(40):
        L(f"v_sub_f32 v92, v{x0+i}, v90")
        L("v_fmac_f32 v91, v92, v92")
    dpp_sum(91)
    L(f"v_mul_f32 v91, {1.0/640!r}, v91")
    rbf(91, 91)
    L("v_add_f32 v91, 0x3727c5ac, v91"); rbf(91, 91)
    L("v_sqrt_f32 v91, v91"); L("s_nop 0"); rbf(91, 91)
    L("v_rcp_f32 v91, v91")
    rbf(90, 90)
    for i in range(40):
        L(f"v_sub_f32 v{100+i}, v{x0+i}, v90"); rbf(100+i, 100+i)
        L(f"v_mul_f32 v{100+i}, v{100+i}, v91"); rbf(100+i, 100+i)

def gen_ln(name, in_k, in_off, out_off):
    kbegin(name)
    L("s_cmp_ge_u32 s2, 512")
    L(f"s_cbranch_scc1 {name}_end")
    L(f"s_load_dwordx2 s[4:5], s[0:1], {in_k}")
    L("s_load_dwordx2 s[6:7], s[0:1], 96")
    L("v_lshrrev_b32 v1, 4, v0")
    L("v_and_b32 v2, 15, v0")
    L("v_lshl_add_u32 v1, s2, 2, v1")
    L("v_mul_u32_u24 v3, 1280, v1")
    L("v_lshl_add_u32 v3, v2, 4, v3")
    L("s_waitcnt lgkmcnt(0)")
    srd(8, 4, 5, in_off, XB); srd(12, 6, 7, Y_OFF, XB); srd(16, 6, 7, out_off, XB); srd(20, 6, 7, XN_OFF, XN_SZ)
    for i in range(5):
        L(f"buffer_load_dwordx4 v[{140+4*i}:{143+4*i}], v3, s[8:11], 0 offen offset:{256*i}")
    L("v_lshlrev_b32 v6, 15, v2")
    L("v_lshl_add_u32 v6, v1, 3, v6")
    for i in range(5):
        L(f"buffer_load_dwordx2 v[{160+4*i}:{161+4*i}], v6, s[12:15], 0 offen")
        L("v_add_u32 v6, 16384, v6")
        L(f"buffer_load_dwordx2 v[{162+4*i}:{163+4*i}], v6, s[12:15], 0 offen")
        L(f"v_add_u32 v6, {31*16384}, v6")
    L("s_waitcnt vmcnt(10)")
    for i in range(20):
        L(f"v_lshlrev_b32 v{10+2*i}, 16, v{140+i}")
        L(f"v_and_b32 v{11+2*i}, 0xffff0000, v{140+i}")
    ln_core(10)
    L("s_waitcnt vmcnt(0)")
    for i in range(20):
        for h in range(2):
            j = 2*i+h
            if h == 0: L(f"v_lshlrev_b32 v92, 16, v{160+i}")
            else: L(f"v_and_b32 v92, 0xffff0000, v{160+i}")
            L(f"v_mul_f32 v92, v92, v{100+j}"); rbf(92, 92)
            L(f"v_add_f32 v{10+j}, v{10+j}, v92"); rbf(10+j, 10+j)
        L(f"v_cvt_pk_bf16_f32 v{140+i}, v{10+2*i}, v{11+2*i}")
    for i in range(5):
        L(f"buffer_store_dwordx4 v[{140+4*i}:{143+4*i}], v3, s[16:19], 0 offen offset:{256*i}")
    ln_core(10)
    for i in range(20):
        L(f"v_cvt_pk_bf16_f32 v{160+i}, v{100+2*i}, v{101+2*i}")
    L("v_lshrrev_b32 v4, 5, v1")
    L(f"v_mul_u32_u24 v4, {S40}, v4")
    L("v_and_b32 v5, 31, v1")
    L("v_lshl_add_u32 v4, v5, 4, v4")
    L("v_lshl_add_u32 v4, v2, 9, v4")
    for i in range(5):
        L(f"buffer_store_dwordx4 v[{160+4*i}:{163+4*i}], v4, s[20:23], 0 offen")
        L("v_add_u32 v4, 8192, v4")
    e(f"{name}_end:")
    L("s_endpgm")
    kdesc(name, 184)
    return (512, 64, 0)

def gen_gemm(name, kind, res_off=None, out_ws=True, out_off=None):
    gu = kind == "gu"
    KS = 40 if gu else 108
    TN = 4 if gu else 2
    NCT = 27 if gu else 10
    NWG = 16 * NCT
    STG = (4 + TN) * 4096
    NS = KS // 4
    WN = TN // 2
    NDMA = 4 + TN
    NB = 4 if gu else 6
    kbegin(name)
    L(f"s_cmp_ge_u32 s2, {NWG}")
    L(f"s_cbranch_scc1 {name}_end")
    L("s_load_dwordx2 s[4:5], s[0:1], 96")
    L("s_load_dwordx2 s[6:7], s[0:1], 80")
    L("s_lshr_b32 s3, s2, 3")
    L(f"s_mul_hi_u32 s24, s3, {(2**32+NCT-1)//NCT}")
    L(f"s_mul_i32 s25, s24, {NCT}")
    L("s_sub_u32 s25, s3, s25")
    L("s_and_b32 s3, s2, 7")
    L("s_lshl_b32 s3, s3, 1")
    L("s_add_u32 s24, s24, s3")
    L("v_lshrrev_b32 v4, 6, v0")
    L("v_and_b32 v5, 63, v0")
    L("v_lshlrev_b32 v5, 4, v5")
    L("v_readfirstlane_b32 s26, v4")
    L("s_waitcnt lgkmcnt(0)")
    if gu:
        srd(8, 4, 5, XN_OFF, XB); srd(12, 4, 5, WGU_OFF, WGU_SZ); srd(16, 4, 5, H_OFF, H_SZ)
    else:
        srd(8, 4, 5, H_OFF, H_SZ); srd(12, 4, 5, WD_OFF, WD_SZ)
        if out_ws: srd(16, 4, 5, out_off, XB)
        else: srd(16, 6, 7, 0, XB)
        srd(20, 4, 5, res_off, XB)
    L("s_lshl_b32 s27, s24, 2"); L("s_add_u32 s27, s27, s26"); L(f"s_mul_i32 s27, s27, {KS*1024}")
    L("v_add_u32 v1, s27, v5")
    L("s_lshl_b32 s28, s26, 12")
    if gu:
        L("s_lshl_b32 s27, s25, 2"); L("s_add_u32 s27, s27, s26"); L(f"s_mul_i32 s27, s27, {KS*1024}")
        L("s_add_u32 s29, s28, 16384")
    else:
        L("s_and_b32 s30, s26, 1"); L("s_lshr_b32 s31, s26, 1")
        L("s_lshl_b32 s27, s25, 1"); L("s_add_u32 s27, s27, s30"); L(f"s_mul_i32 s27, s27, {KS*1024}")
        L("s_lshl_b32 s31, s31, 11"); L("s_add_u32 s27, s27, s31")
        L("s_lshl_b32 s29, s30, 12"); L("s_add_u32 s29, s29, s31"); L("s_add_u32 s29, s29, 16384")
    L("v_add_u32 v2, s27, v5")
    L("s_lshr_b32 s30, s26, 1"); L("s_and_b32 s31, s26, 1")
    L("s_lshl_b32 s32, s30, 13")
    L("v_add_u32 v6, s32, v5")
    L(f"s_mul_i32 s32, s31, {WN*4096}"); L("s_add_u32 s32, s32, 16384")
    L("v_add_u32 v7, s32, v5")
    ACC = 64
    for i in range(32 * WN): L(f"v_mov_b32 v{ACC+i}, 0")
    L("s_mov_b32 s33, 0")
    L("s_mov_b32 s34, 0")
    def issue():
        L("s_add_u32 m0, s34, s28")
        L("s_nop 0")
        for kk in range(4):
            L(f"buffer_load_dwordx4 v1, s[8:11], s33 offen offset:{kk*1024} lds")
        L("s_add_u32 m0, s34, s29")
        L("s_nop 0")
        for kk in range(TN):
            L(f"buffer_load_dwordx4 v2, s[12:15], s33 offen offset:{kk*1024} lds")
        L("s_add_u32 s33, s33, 4096")
        L(f"s_add_u32 s34, s34, {STG}")
        L(f"s_cmp_eq_u32 s34, {NB*STG}")
        L("s_cselect_b32 s34, 0, s34")
    for _ in range(NB-1): issue()
    L("s_mov_b32 s35, 0")
    L("s_mov_b32 s36, 0")
    e(f"{name}_loop:")
    L(f"s_waitcnt vmcnt({NDMA*(NB-2)})")
    L("s_barrier")
    issue()
    L("v_add_u32 v8, s35, v6")
    L("v_add_u32 v9, s35, v7")
    NF = 2 + WN
    def rd(kk):
        b = 10 + (kk % 2) * NF * 4
        for r in range(2):
            L(f"ds_read_b128 v[{b+4*r}:{b+4*r+3}], v8 offset:{r*4096+kk*1024}")
        for n in range(WN):
            L(f"ds_read_b128 v[{b+8+4*n}:{b+8+4*n+3}], v9 offset:{n*4096+kk*1024}")
    rd(0)
    for kk in range(4):
        if kk < 3:
            rd(kk+1); L(f"s_waitcnt lgkmcnt({NF})")
        else:
            L("s_waitcnt lgkmcnt(0)")
        b = 10 + (kk % 2) * NF * 4
        for r in range(2):
            for n in range(WN):
                a = ACC + 16 * (r * WN + n)
                L(f"v_mfma_f32_32x32x16_bf16 v[{a}:{a+15}], v[{b+8+4*n}:{b+8+4*n+3}], v[{b+4*r}:{b+4*r+3}], v[{a}:{a+15}]")
    L(f"s_add_u32 s35, s35, {STG}")
    L(f"s_cmp_eq_u32 s35, {NB*STG}")
    L("s_cselect_b32 s35, 0, s35")
    L("s_add_u32 s36, s36, 1")
    L(f"s_cmp_lt_u32 s36, {NS}")
    L(f"s_cbranch_scc1 {name}_loop")
    L("s_nop 15")
    L("v_and_b32 v10, 31, v0")
    L("v_bfe_u32 v11, v0, 5, 1")
    if gu:
        for r in range(2):
            L("s_lshl_b32 s40, s24, 2"); L("s_lshl_b32 s41, s30, 1"); L("s_add_u32 s40, s40, s41")
            L(f"s_add_u32 s40, s40, {r}"); L("s_mul_i32 s40, s40, 108")
            L("s_lshl_b32 s41, s25, 2"); L("s_add_u32 s40, s40, s41"); L("s_lshl_b32 s41, s31, 1"); L("s_add_u32 s40, s40, s41")
            L("s_lshl_b32 s40, s40, 10")
            L("v_lshlrev_b32 v12, 4, v10")
            L("v_lshl_add_u32 v12, v11, 3, v12")
            g0 = ACC + 32 * r; u0 = g0 + 16
            for i in range(16):
                rbf(g0+i, g0+i); rbf(u0+i, u0+i)
                L(f"v_mul_f32 v{g0+i}, 0xbfb8aa3b, v{g0+i}")
                L(f"v_exp_f32 v{g0+i}, v{g0+i}")
                L("s_nop 0")
                L(f"v_add_f32 v{g0+i}, 1.0, v{g0+i}")
                L(f"v_rcp_f32 v{g0+i}, v{g0+i}")
                L("s_nop 0")
                rbf(g0+i, g0+i)
                L(f"v_mul_f32 v{g0+i}, v{g0+i}, v{u0+i}")
            for g4 in range(4):
                L(f"v_cvt_pk_bf16_f32 v14, v{g0+4*g4}, v{g0+4*g4+1}")
                L(f"v_cvt_pk_bf16_f32 v15, v{g0+4*g4+2}, v{g0+4*g4+3}")
                L(f"buffer_store_dwordx2 v[14:15], v12, s[16:19], s40 offen offset:{(g4//2)*1024+(g4%2)*512}")
                L("s_nop 1")
    else:
        for r in range(2):
            L("s_lshl_b32 s40, s24, 7"); L("s_lshl_b32 s41, s30, 6"); L("s_add_u32 s40, s40, s41")
            L(f"s_add_u32 s40, s40, {32*r}")
            L("v_add_u32 v12, s40, v10")
            L("v_mul_u32_u24 v12, 1280, v12")
            L("s_lshl_b32 s40, s25, 7"); L("s_lshl_b32 s41, s31, 6"); L("s_add_u32 s40, s40, s41")
            L("v_lshl_add_u32 v13, v11, 3, s40")
            L("v_add_u32 v12, v12, v13")
            a0 = ACC + 16 * r
            for g4 in range(4):
                L(f"buffer_load_dwordx2 v[{16+2*g4}:{17+2*g4}], v12, s[20:23], 0 offen offset:{16*g4}")
            for g4 in range(4):
                L(f"s_waitcnt vmcnt({3-g4})" if r == 0 else f"s_waitcnt vmcnt({min(3-g4, 3)})")
                for i in range(4):
                    rbf(a0+4*g4+i, a0+4*g4+i)
                    if i % 2 == 0: L(f"v_lshlrev_b32 v14, 16, v{16+2*g4+i//2}")
                    else: L(f"v_and_b32 v14, 0xffff0000, v{16+2*g4+i//2}")
                    L(f"v_add_f32 v{a0+4*g4+i}, v{a0+4*g4+i}, v14")
                L(f"v_cvt_pk_bf16_f32 v{24+2*g4}, v{a0+4*g4}, v{a0+4*g4+1}")
                L(f"v_cvt_pk_bf16_f32 v{25+2*g4}, v{a0+4*g4+2}, v{a0+4*g4+3}")
            for g4 in range(4):
                L(f"buffer_store_dwordx2 v[{24+2*g4}:{25+2*g4}], v12, s[16:19], 0 offen offset:{16*g4}")
            L("s_waitcnt vmcnt(0)")
    e(f"{name}_end:")
    L("s_endpgm")
    kdesc(name, ACC + 32 * WN)
    return (NWG, 256, NB * STG)

def gen_gemm2(name, kind, res_off=None, out_ws=True, out_off=None):
    gu = kind == "gu"
    KS = 40 if gu else 108
    RN = 4 if gu else 2
    RM = 2
    NCT = 27 if gu else 10
    NWG = 8 * NCT if gu else 32 * NCT
    DEP = 4 if gu else 3
    NL = RM + RN
    kbegin(name)
    L(f"s_cmp_ge_u32 s2, {NWG}")
    L(f"s_cbranch_scc1 {name}_end")
    stamp(0)
    L("s_load_dwordx2 s[4:5], s[0:1], 96")
    L("s_load_dwordx2 s[6:7], s[0:1], 80")
    L("s_lshr_b32 s3, s2, 3")
    L(f"s_mul_hi_u32 s24, s3, {(2**32+NCT-1)//NCT}")
    L(f"s_mul_i32 s25, s24, {NCT}")
    L("s_sub_u32 s25, s3, s25")
    L("s_and_b32 s3, s2, 7")
    L("s_lshl_b32 s3, s3, 2")
    L("s_add_u32 s24, s24, s3")
    L("v_and_b32 v9, 63, v0")
    L("v_lshlrev_b32 v9, 4, v9")
    L("v_lshrrev_b32 v8, 6, v0")
    L("s_nop 1")
    L("v_readfirstlane_b32 s26, v8")
    if gu:
        L("s_and_b32 s3, s2, 7"); L("s_mul_i32 s3, s3, 27"); L("s_lshr_b32 s24, s2, 3"); L("s_add_u32 s3, s3, s24")
        L("s_lshr_b32 s25, s3, 3"); L("s_and_b32 s24, s3, 7"); L("s_lshl_b32 s24, s24, 2")
        L("s_add_u32 s24, s24, s26")
    L("s_waitcnt lgkmcnt(0)")
    if gu:
        srd(8, 4, 5, XN_OFF, XN_SZ); srd(12, 4, 5, WGU_OFF, WGU_SZ); srd(16, 4, 5, H_OFF, H_SZ)
    else:
        srd(8, 4, 5, H_OFF, H_SZ); srd(12, 4, 5, WD_OFF, WD_SZ)
        if out_ws: srd(16, 4, 5, out_off, XB)
        else: srd(16, 6, 7, 0, XB)
        srd(20, 4, 5, res_off, XB)
    for r in range(RM):
        L("s_lshl_b32 s27, s24, 1"); L(f"s_add_u32 s27, s27, {r}"); L(f"s_mul_i32 s27, s27, {S40 if gu else S108}")
        L(f"v_add_u32 v{1+r}, s27, v9")
    for n in range(RN):
        L(f"s_mul_i32 s27, s25, {RN}"); L(f"s_add_u32 s27, s27, {n}"); L(f"s_mul_i32 s27, s27, {S40 if gu else S108}")
        L(f"v_add_u32 v{3+n}, s27, v9")
    FB = 16
    if gu:
        ACC = 80
        for i in range(128): L(f"v_mov_b32 v{ACC+i}, 0")
        L(f"s_mul_i32 s27, s25, 4"); L("s_add_u32 s27, s27, s26"); L(f"s_mul_i32 s27, s27, {S40}")
        L("v_add_u32 v3, s27, v9")
        L("s_lshl_b32 s27, s26, 12")
        L("v_add_u32 v4, s27, v9")
        L("s_mov_b32 s33, 0"); L("s_mov_b32 s34, 0")
        def wl():
            for kk in range(4): L(f"buffer_load_dwordx4 v[{48+4*kk}:{51+4*kk}], v3, s[12:15], s34 offen offset:{1024*kk}")
            L("s_add_u32 s34, s34, 4096")
        def al(j):
            for r in range(2): L(f"buffer_load_dwordx4 v[{16+8*j+4*r}:{19+8*j+4*r}], v{1+r}, s[8:11], s33 offen")
            L("s_add_u32 s33, s33, 1024")
        wl()
        L("s_waitcnt vmcnt(0)")
        for kk in range(4): L(f"ds_write_b128 v4, v[{48+4*kk}:{51+4*kk}] offset:{1024*kk}")
        wl()
        for j in range(4): al(j)
        L("s_waitcnt lgkmcnt(0)")
        L("s_barrier")
        stamp(1)
        L("s_mov_b32 s36, 0")
        L("v_mov_b32 v5, v9")
        e(f"{name}_loop:")
        L("s_waitcnt vmcnt(8)")
        L("v_xor_b32 v4, 16384, v4")
        for kk in range(4): L(f"ds_write_b128 v4, v[{48+4*kk}:{51+4*kk}] offset:{1024*kk}")
        L("s_waitcnt lgkmcnt(0)")
        wl()
        for j in range(4):
            for n in range(4): L(f"ds_read_b128 v[{64+4*n}:{67+4*n}], v5 offset:{4096*n+1024*j}")
            L("s_waitcnt vmcnt(10)")
            for n in range(4):
                L(f"s_waitcnt lgkmcnt({3-n})")
                for r in range(2):
                    a_ = ACC + 16 * (r * 4 + n)
                    L(f"v_mfma_f32_32x32x16_bf16 v[{a_}:{a_+15}], v[{64+4*n}:{67+4*n}], v[{16+8*j+4*r}:{19+8*j+4*r}], v[{a_}:{a_+15}]")
            al(j)
        L("v_xor_b32 v5, 16384, v5")
        L("s_barrier")
        L("s_add_u32 s36, s36, 1")
        L("s_cmp_lt_u32 s36, 10")
        L(f"s_cbranch_scc1 {name}_loop")
    else:
        ACC = FB + DEP * NL * 4
        for i in range(16 * RM * RN): L(f"v_mov_b32 v{ACC+i}, 0")
        L("s_mov_b32 s33, 0" if gu else "s_mul_i32 s33, s26, 27648")
        def issue(j):
            b = FB + j * NL * 4
            for r in range(RM):
                L(f"buffer_load_dwordx4 v[{b+4*r}:{b+4*r+3}], v{1+r}, s[8:11], s33 offen")
            for n in range(RN):
                L(f"buffer_load_dwordx4 v[{b+4*RM+4*n}:{b+4*RM+4*n+3}], v{3+n}, s[12:15], s33 offen")
            L("s_add_u32 s33, s33, 1024")
        for j in range(DEP): issue(j)
        stamp(1)
        L("s_mov_b32 s36, 0")
        e(f"{name}_loop:")
        for j in range(DEP):
            L(f"s_waitcnt vmcnt({(DEP-1)*NL})")
            b = FB + j * NL * 4
            for r in range(RM):
                for n in range(RN):
                    a = ACC + 16 * (r * RN + n)
                    L(f"v_mfma_f32_32x32x16_bf16 v[{a}:{a+15}], v[{b+4*RM+4*n}:{b+4*RM+4*n+3}], v[{b+4*r}:{b+4*r+3}], v[{a}:{a+15}]")
            issue(j)
        L("s_add_u32 s36, s36, 1")
        L(f"s_cmp_lt_u32 s36, {KS//DEP if gu else 9}")
        L(f"s_cbranch_scc1 {name}_loop")
    L("s_nop 15")
    stamp(2)
    L("v_and_b32 v10, 31, v0")
    L("v_bfe_u32 v11, v0, 5, 1")
    if gu:
        for r in range(2):
          for p in range(2):
            L("s_lshl_b32 s40, s24, 1"); L(f"s_add_u32 s40, s40, {r}"); L(f"s_mul_i32 s40, s40, {S108}")
            L("s_lshl_b32 s41, s25, 12"); L("s_add_u32 s40, s40, s41"); L(f"s_add_u32 s40, s40, {2048*p}")
            L("v_lshlrev_b32 v12, 4, v10")
            L("v_lshl_add_u32 v12, v11, 3, v12")
            g0 = ACC + 16 * (r * 4 + 2 * p); u0 = g0 + 16
            for i in range(16):
                rbf(g0+i, g0+i); rbf(u0+i, u0+i)
                L(f"v_mul_f32 v{g0+i}, 0xbfb8aa3b, v{g0+i}")
                L(f"v_exp_f32 v{g0+i}, v{g0+i}")
                L("s_nop 0")
                L(f"v_add_f32 v{g0+i}, 1.0, v{g0+i}")
                L(f"v_rcp_f32 v{g0+i}, v{g0+i}")
                L("s_nop 0")
                rbf(g0+i, g0+i)
                L(f"v_mul_f32 v{g0+i}, v{g0+i}, v{u0+i}")
            for g4 in range(4):
                L(f"v_cvt_pk_bf16_f32 v14, v{g0+4*g4}, v{g0+4*g4+1}")
                L(f"v_cvt_pk_bf16_f32 v15, v{g0+4*g4+2}, v{g0+4*g4+3}")
                L(f"buffer_store_dwordx2 v[14:15], v12, s[16:19], s40 offen offset:{(g4//2)*1024+(g4%2)*512}")
                L("s_nop 1")
    else:
        L("s_waitcnt vmcnt(0)")
        L("s_lshl_b32 s40, s26, 14")
        L("v_add_u32 v8, s40, v9")
        for i in range(16):
            L(f"ds_write_b128 v8, v[{ACC+4*i}:{ACC+4*i+3}] offset:{1024*i}")
        L("s_lshr_b32 s30, s26, 1"); L("s_and_b32 s31, s26, 1")
        L("s_lshl_b32 s40, s24, 6"); L("s_lshl_b32 s41, s30, 5"); L("s_add_u32 s40, s40, s41")
        L("v_add_u32 v12, s40, v10")
        L("v_mul_u32_u24 v12, 1280, v12")
        L("s_lshl_b32 s40, s25, 7"); L("s_lshl_b32 s41, s31, 6"); L("s_add_u32 s40, s40, s41")
        L("v_lshl_add_u32 v13, v11, 3, s40")
        L("v_add_u32 v12, v12, v13")
        for g4 in range(4):
            L(f"buffer_load_dwordx2 v[{16+2*g4}:{17+2*g4}], v12, s[20:23], 0 offen offset:{16*g4}")
        L("s_lshl_b32 s40, s26, 12")
        L("v_add_u32 v8, s40, v9")
        L("s_waitcnt lgkmcnt(0)")
        L("s_barrier")
        for w in range(4):
            for g4 in range(4):
                L(f"ds_read_b128 v[{ACC+16*w+4*g4}:{ACC+16*w+4*g4+3}], v8 offset:{16384*w+1024*g4}")
        L("s_waitcnt lgkmcnt(0) vmcnt(0)")
        a0 = ACC
        for i in range(16):
            L(f"v_add_f32 v{a0+i}, v{a0+i}, v{a0+16+i}")
            L(f"v_add_f32 v{a0+32+i}, v{a0+32+i}, v{a0+48+i}")
            L(f"v_add_f32 v{a0+i}, v{a0+i}, v{a0+32+i}")
        for g4 in range(4):
            for i in range(4):
                rbf(a0+4*g4+i, a0+4*g4+i)
                if i % 2 == 0: L(f"v_lshlrev_b32 v14, 16, v{16+2*g4+i//2}")
                else: L(f"v_and_b32 v14, 0xffff0000, v{16+2*g4+i//2}")
                L(f"v_add_f32 v{a0+4*g4+i}, v{a0+4*g4+i}, v14")
            L(f"v_cvt_pk_bf16_f32 v{24+2*g4}, v{a0+4*g4}, v{a0+4*g4+1}")
            L(f"v_cvt_pk_bf16_f32 v{25+2*g4}, v{a0+4*g4+2}, v{a0+4*g4+3}")
        for g4 in range(4):
            L(f"buffer_store_dwordx2 v[{24+2*g4}:{25+2*g4}], v12, s[16:19], 0 offen offset:{16*g4}")
    stamp(3)
    stamp_out(4)
    e(f"{name}_end:")
    L("s_endpgm")
    kdesc(name, 256 if STAMP else ACC + 16 * RM * RN)
    return (NWG, 256, 32768) if gu else (NWG, 256, 65536)

launches = []
def add(n, cfg): launches.append((n, cfg))
add("ka_kernel", gen_pre("ka_kernel"))
add("k0_kernel", gen_conv("k0_kernel"))
add("k1_kernel", gen_ln("k1_kernel", 0, 0, X1_OFF))
add("k2_kernel", gen_gemm2("k2_kernel", "gu"))
add("k3_kernel", gen_gemm2("k3_kernel", "dn", res_off=X1_OFF, out_ws=True, out_off=X2_OFF))
add("k4_kernel", gen_ln("k4_kernel", 96, X2_OFF, X3_OFF))
add("k5_kernel", gen_gemm2("k5_kernel", "gu"))
add("k6_kernel", gen_gemm2("k6_kernel", "dn", res_off=X3_OFF, out_ws=False))
hdr = [f"; @launch kernel={n} grid=({g},1,1) block=({b},1,1) lds={l}" for n, (g, b, l) in launches]
txt = "\n".join(hdr) + '\n.amdgcn_target "amdgcn-amd-amdhsa--gfx950"\n.text\n' + "\n".join(out) + '\n.section .rodata,"a"\n' + "\n".join(".p2align 6\n" + d for d in descs) + "\n"
open(f"cdna_kernels/{NAME}.s", "w").write(txt)
```
